```python
import torch

def _softmax(x, axis=-1):
    return torch.softmax(x, dim=axis)
def _gelu(x):
    return torch.nn.functional.gelu(x, approximate="tanh")
def _silu(x):
    return torch.nn.functional.silu(x)
def _sigmoid(x):
    return torch.sigmoid(x)
def _layernorm(x, axis=-1, eps=1e-5):
    m = x.mean(dim=axis, keepdim=True)
    v = x.var(dim=axis, keepdim=True, unbiased=False)
    return (x - m) / torch.sqrt(v + eps)
def _scatter_add(tgt, idx, src, axis=0):
    return tgt.clone().index_add_(axis, idx, src)
def _segment_sum(src, seg, n):
    out = torch.zeros((n,) + src.shape[1:], dtype=src.dtype)
    return out.index_add_(0, seg, src)
def _pad(x, pw):
    flat = tuple(v for pair in reversed(pw) for v in pair)
    return torch.nn.functional.pad(x, flat)

kernel_name = 'standalone__ragged_sequences_packed_sequences__ragged'

def setup_inputs():

    _w = (lambda a: (lambda t: t.to(torch.bfloat16) if t.is_floating_point() else t)(torch.as_tensor(a)))
    cu = torch.tensor([0, 400, 516, 964, 1456, 1702, 1900, 2021, 2266], dtype=torch.int64)
    T = int(cu[-1])
    H, D = 16, 128
    lens = torch.diff(cu)
    seg_ids = torch.repeat_interleave(torch.arange(len(lens), dtype=torch.int64), lens)
    return {
        "q": _w((lambda *s: torch.randn(*s, dtype=torch.bfloat16) * 0.8)(T, H, D)),
        "k": _w((lambda *s: torch.randn(*s, dtype=torch.bfloat16) * 0.8)(T, H, D)),
        "v": _w((lambda *s: torch.randn(*s, dtype=torch.bfloat16) * 0.05)(T, H, D)),
        "seg_ids": _w(seg_ids),
    }

def reference(q, k, v, seg_ids):
    T, H, D = q.shape
    scale = D ** -0.5
    same_seq = seg_ids[:, None] == seg_ids[None, :]
    logits = torch.einsum("qhd,khd->hqk", q, k) * scale
    bias = (1.0 - (lambda x, dt: x.to(dt))(same_seq, q.dtype)) * (-1e9)
    p = _softmax(logits + bias[None, :, :], axis=-1)
    return torch.einsum("hqk,khd->qhd", p, v)
```

```python
import sys, math

NAME = "standalone__ragged_sequences_packed_sequences__ragged"
T, H, D = 2266, 16, 128
ROWB = 4096
KPAD, VPAD = 1040, 1088
KBLK, VBLK = 8 * KPAD, 8 * VPAD
BLK = KBLK + VBLK
STAGE = 2 * BLK
RS = 4
RING = RS * STAGE
LDS_BYTES = 139264
CSCALE = (D ** -0.5) * math.log2(math.e)
THR_RAW = 8.0 / CSCALE

import struct
def f2u(x):
    return struct.unpack("<I", struct.pack("<f", x))[0]

jobs = []
for j in range(4):
    jobs.append((964, 1456, 8, 2 * j, 964 + 128 * j, min(964 + 128 * (j + 1), 1456), 0))
for qo, qe, s0 in zip((0, 128, 256, 352), (128, 256, 352, 448), (0, 2, 4, 5)):
    jobs.append((516, 964, 7, s0, 516 + qo, 516 + qe, 0))
for qo, qe, s0 in zip((0, 128, 224, 320), (128, 224, 320, 400), (0, 2, 4, 5)):
    jobs.append((0, 400, 7, s0, qo, qe, 0))
jobs.append((1456, 1702, 4, 0, 1456, 1702, 1))
jobs.append((2021, 2266, 4, 0, 2021, 2266, 1))
jobs.append((1702, 1900, 4, 0, 1702, 1900, 1))
jobs.append((400, 516, 4, 0, 400, 516, 2))
DUAL_B = (1900, 2021)
assert len(jobs) == 16

out = []
def e(s=""):
    out.append("    " + s if s and not s.endswith(":") else s)
def lab(s):
    out.append(s + ":")

S_Q, S_K, S_V, S_O = 4, 6, 8, 12
SRD_Q, SRD_KA, SRD_KB, SRD_VA, SRD_VB, SRD_O = 16, 20, 24, 28, 32, 36
s_w0, s_w1 = 40, 41
s_abase, s_aend, s_bbase, s_bend = 42, 43, 44, 45
s_NS, s_sig0, s_mode = 46, 47, 48
s_wave, s_grp, s_head256 = 49, 50, 51
s_q0, s_qend = 52, 53
s_strideB, s_span = 54, 55
s_mk, s_mv = 56, 57
s_dk, s_dks, s_nk, s_pv, s_pvoff, s_pvslot = 58, 59, 60, 61, 62, 63
s_issued, s_need, s_needstep = 64, 65, 66
s_lk, s_lv, s_lstep = 67, 68, 69
s_uoff, s_ustep, s_uspan, s_rows = 70, 71, 72, 73
s_kv, s_cnt, s_resc = 74, 75, 76
s_c, s_t, s_t2, s_t3 = 77, 78, 79, 80
s_job = 81
v_lane, v_h4, v_kbase, v_vbase, v_ka, v_va, v_dk, v_dv = 1, 2, 3, 4, 5, 6, 7, 8
v_m, v_mc, v_mthr, v_l0, v_l1, v_f, v_ninf = 9, 10, 11, 12, 13, 14, 15
VQ, VO, VS, VX, VP, VKF, VVF, VT = 16, 48, 112, 128, 144, 152, 184, 216
NVGPR = 232

def vr(b, n):
    return f"v[{b}:{b+n-1}]"
def sr(b, n):
    return f"s[{b}:{b+n-1}]"

class Lgkm:
    def __init__(self):
        self.issued = 0
        self.done = 0
    def issue(self):
        self.issued += 1
        assert self.issued - self.done <= 15, "too many LDS ops outstanding"
        return self.issued - 1
    def need(self, idx):
        if idx >= self.done:
            n = self.issued - idx - 1
            e(f"s_waitcnt lgkmcnt({n})")
            self.done = idx + 1
    def reset(self):
        self.issued = 0; self.done = 0

lg = Lgkm()

def k_read(s):
    e(f"ds_read_b128 {vr(VKF+4*s,4)}, v{v_ka} offset:{16*s}")
    return lg.issue()
def v_read(dt, t, jj):
    e(f"ds_read_b64_tr_b16 {vr(VVF+(dt*2+t)*4+jj*2,2)}, v{v_va} offset:{(2*t+jj)*256+64*dt}")
    return lg.issue()
def qk_mfma(s):
    c = "0" if s == 0 else vr(VS, 16)
    e(f"v_mfma_f32_32x32x16_bf16 {vr(VS,16)}, {vr(VKF+4*s,4)}, {vr(VQ+4*s,4)}, {c}")
def pv_mfma(dt, t):
    e(f"v_mfma_f32_32x32x16_bf16 {vr(VO+16*dt,16)}, {vr(VVF+(dt*2+t)*4,4)}, {vr(VP+4*t,4)}, {vr(VO+16*dt,16)}")

def exp_fillers():
    f = []
    for k in range(0, 16, 2):
        f.append(f"v_exp_f32 v{VX+k}, v{VX+k}")
        f.append(f"v_exp_f32 v{VX+k+1}, v{VX+k+1}")
        if k >= 2:
            f.append(f"v_add_f32 v{v_l0}, v{v_l0}, v{VX+k-2}")
            f.append(f"v_add_f32 v{v_l1}, v{v_l1}, v{VX+k-1}")
            f.append(f"v_cvt_pk_bf16_f32 v{VP+(k-2)//2}, v{VX+k-2}, v{VX+k-1}")
    f.append("s_nop 0")
    f.append(f"v_add_f32 v{v_l0}, v{v_l0}, v{VX+14}")
    f.append(f"v_add_f32 v{v_l1}, v{v_l1}, v{VX+15}")
    f.append(f"v_cvt_pk_bf16_f32 v{VP+7}, v{VX+14}, v{VX+15}")
    return f

def max_chain():
    t = VT
    f = [
        f"v_max3_f32 v{t}, v{VS+0}, v{VS+1}, v{VS+2}",
        f"v_max3_f32 v{t+1}, v{VS+3}, v{VS+4}, v{VS+5}",
        f"v_max3_f32 v{t+2}, v{VS+6}, v{VS+7}, v{VS+8}",
        f"v_max3_f32 v{t+3}, v{VS+9}, v{VS+10}, v{VS+11}",
        f"v_max3_f32 v{t+4}, v{VS+12}, v{VS+13}, v{VS+14}",
        f"v_max3_f32 v{t}, v{t}, v{t+1}, v{VS+15}",
        f"v_max3_f32 v{t+2}, v{t+2}, v{t+3}, v{t+4}",
        f"v_max_f32 v{t}, v{t}, v{t+2}",
        f"v_mov_b32 v{t+1}, v{t}",
        "s_nop 1",
        f"v_permlane32_swap_b32 v{t}, v{t+1}",
        f"v_max_f32 v{t}, v{t}, v{t+1}",
    ]
    return f

def fma_fillers():
    return [f"v_fma_f32 v{VX+k}, v{VS+k}, s{s_c}, -v{v_mc}" for k in range(16)]

ool = []
def mask_block(tag):
    b = [f"L_mask_{tag}:"]
    for r in range(16):
        c = (r & 3) + 8 * (r >> 2)
        b.append(f"    s_sub_i32 s{s_t}, s{s_kv}, {c}")
        b.append(f"    v_cmp_gt_i32 vcc, s{s_t}, v{v_h4}")
        b.append("    s_nop 1")
        b.append(f"    v_cndmask_b32 v{VS+r}, v{v_ninf}, v{VS+r}, vcc")
    b.append(f"    s_branch L_maskdone_{tag}")
    ool.append(b)
    e(f"s_cmp_lt_i32 s{s_kv}, 32")
    e(f"s_cbranch_scc1 L_mask_{tag}")
    lab(f"L_maskdone_{tag}")

def advance_unit():
    e(f"s_add_u32 s{s_uoff}, s{s_uoff}, s{s_ustep}")
    e(f"s_cmp_ge_u32 s{s_uoff}, s{s_uspan}")
    e(f"s_cselect_b32 s{s_t}, s{s_uspan}, 0")
    e(f"s_sub_u32 s{s_uoff}, s{s_uoff}, s{s_t}")
    e(f"s_sub_i32 s{s_kv}, s{s_rows}, s{s_uoff}")

def advance_lds(reg):
    e(f"s_add_u32 s{reg}, s{reg}, s{s_lstep}")
    e(f"s_cmp_ge_u32 s{reg}, {RING}")
    e(f"s_cselect_b32 s{s_t}, {RING}, 0")
    e(f"s_sub_u32 s{reg}, s{reg}, s{s_t}")

def interleave(mf, fillers, pre=0):
    def emit(x):
        if callable(x): x()
        else: e(x)
    fi = 0
    for _ in range(pre):
        emit(fillers[fi]); fi += 1
    rest = len(fillers) - fi
    n = len(mf)
    for i, m in enumerate(mf):
        m()
        upto = pre + (rest * (i + 1)) // n
        while fi < upto:
            emit(fillers[fi]); fi += 1

out.append(f"; @launch grid=(256,1,1) block=(512,1,1) lds={LDS_BYTES}")
out.append('.amdgcn_target "amdgcn-amd-amdhsa--gfx950"')
out.append(".text")
out.append(f".globl {NAME}_kernel")
out.append(".p2align 8")
out.append(f".type {NAME}_kernel,@function")
lab(f"{NAME}_kernel")
e("s_cmp_ge_u32 s2, 256")
e("s_cbranch_scc1 L_end")
e("s_load_dwordx8 s[4:11], s[0:1], 0")
e("s_load_dwordx2 s[12:13], s[0:1], 32")
e(f"v_lshrrev_b32 v{VT}, 6, v0")
e(f"v_and_b32 v{v_lane}, 63, v0")
e(f"v_readfirstlane_b32 s{s_wave}, v{VT}")
e(f"s_and_b32 s{s_t}, s2, 7")
e(f"s_lshl_b32 s{s_t}, s{s_t}, 1")
e(f"s_bfe_u32 s{s_t2}, s2, 0x10003")
e(f"s_add_u32 s{s_t}, s{s_t}, s{s_t2}")
e(f"s_lshl_b32 s{s_head256}, s{s_t}, 8")
e(f"s_lshr_b32 s{s_job}, s2, 4")
def pack(j):
    a, b, ns, s0, q, qe, mode = jobs[j]
    w0 = a | (b << 12) | (ns << 24) | (s0 << 28)
    w1 = q | (qe << 12) | (mode << 24)
    return w0, w1
w0, w1 = pack(0)
e(f"s_mov_b32 s{s_w0}, {w0:#x}")
e(f"s_mov_b32 s{s_w1}, {w1:#x}")
for j in range(1, 16):
    w0, w1 = pack(j)
    e(f"s_cmp_eq_u32 s{s_job}, {j}")
    e(f"s_cselect_b32 s{s_w0}, {w0:#x}, s{s_w0}")
    e(f"s_cselect_b32 s{s_w1}, {w1:#x}, s{s_w1}")
e(f"s_and_b32 s{s_abase}, s{s_w0}, 0xfff")
e(f"s_bfe_u32 s{s_aend}, s{s_w0}, 0xc000c")
e(f"s_bfe_u32 s{s_NS}, s{s_w0}, 0x40018")
e(f"s_lshr_b32 s{s_sig0}, s{s_w0}, 28")
e(f"s_and_b32 s{s_q0}, s{s_w1}, 0xfff")
e(f"s_bfe_u32 s{s_qend}, s{s_w1}, 0xc000c")
e(f"s_lshr_b32 s{s_mode}, s{s_w1}, 24")
e(f"s_lshr_b32 s{s_grp}, s{s_wave}, 2")
e(f"s_add_u32 s{s_bbase}, s{s_abase}, 32")
e(f"s_mov_b32 s{s_bend}, s{s_aend}")
e(f"s_mov_b32 s{s_strideB}, {64*ROWB}")
e(f"s_cmp_eq_u32 s{s_mode}, 2")
e(f"s_cselect_b32 s{s_bbase}, {DUAL_B[0]}, s{s_bbase}")
e(f"s_cselect_b32 s{s_bend}, {DUAL_B[1]}, s{s_bend}")
e(f"s_cselect_b32 s{s_strideB}, {32*ROWB}, s{s_strideB}")
e(f"s_mul_i32 s{s_span}, s{s_strideB}, s{s_NS}")
e(f"s_and_b32 s{s_t}, s{s_wave}, 3")
e(f"s_cmp_eq_u32 s{s_mode}, 1")
e(f"s_cselect_b32 s{s_t}, s{s_wave}, s{s_t}")
e(f"s_lshl_b32 s{s_t}, s{s_t}, 5")
e(f"s_lshl_b32 s{s_t2}, s{s_grp}, 2")
e(f"s_add_u32 s{s_t2}, s{s_t2}, s{s_mode}")
e(f"s_cmp_eq_u32 s{s_t2}, 6")
e(f"s_cselect_b32 s{s_q0}, {DUAL_B[0]}, s{s_q0}")
e(f"s_cselect_b32 s{s_qend}, {DUAL_B[1]}, s{s_qend}")
e(f"s_add_u32 s{s_q0}, s{s_q0}, s{s_t}")
e(f"s_sub_u32 s{s_rows}, s{s_aend}, s{s_abase}")
e(f"s_sub_u32 s{s_t}, s{s_bend}, s{s_bbase}")
e(f"s_cmp_eq_u32 s{s_t2}, 4")
e(f"s_cselect_b32 s{s_rows}, s{s_t}, s{s_rows}")
e(f"s_cmp_eq_u32 s{s_t2}, 6")
e(f"s_cselect_b32 s{s_rows}, s{s_t}, s{s_rows}")
e(f"s_lshr_b32 s{s_ustep}, s{s_strideB}, 12")
e(f"s_lshr_b32 s{s_uspan}, s{s_span}, 12")
e(f"s_mul_i32 s{s_uoff}, s{s_ustep}, s{s_sig0}")
e(f"s_mul_i32 s{s_lk}, s{s_grp}, {BLK}")
e(f"s_mov_b32 s{s_lstep}, {STAGE}")
e(f"s_mov_b32 s{s_cnt}, s{s_NS}")
e(f"s_mov_b32 s{s_needstep}, 2")
e(f"s_mov_b32 s{s_need}, 2")
e(f"s_add_u32 s{s_t}, s{s_rows}, 31")
e(f"s_lshr_b32 s{s_t}, s{s_t}, 5")
e(f"s_cmp_eq_u32 s{s_mode}, 1")
e(f"s_cselect_b32 s{s_ustep}, 32, s{s_ustep}")
e(f"s_cselect_b32 s{s_uspan}, 0x10000, s{s_uspan}")
e(f"s_cselect_b32 s{s_lk}, 0, s{s_lk}")
e(f"s_cselect_b32 s{s_lstep}, {BLK}, s{s_lstep}")
e(f"s_cselect_b32 s{s_cnt}, s{s_t}, s{s_cnt}")
e(f"s_cselect_b32 s{s_needstep}, 1, s{s_needstep}")
e(f"s_cselect_b32 s{s_need}, 1, s{s_need}")
e(f"s_sub_i32 s{s_kv}, s{s_rows}, s{s_uoff}")
e(f"s_mov_b32 s{s_lv}, s{s_lk}")
e(f"s_mul_i32 s{s_mk}, s{s_wave}, {KPAD}")
e(f"s_mul_i32 s{s_mv}, s{s_wave}, {VPAD}")
e(f"s_add_u32 s{s_mv}, s{s_mv}, {KBLK}")
e(f"s_mul_i32 s{s_dk}, s{s_strideB}, s{s_sig0}")
e(f"s_mov_b32 s{s_c}, {f2u(CSCALE):#x}")
e(f"s_mov_b32 s{s_resc}, 0")
e(f"s_mov_b32 s{s_pv}, 0")
e(f"v_lshrrev_b32 v{VT}, 4, v{v_lane}")
e(f"v_and_b32 v{VT+1}, 15, v{v_lane}")
e(f"v_lshlrev_b32 v{VT+2}, 3, v{VT}")
e(f"v_add_u32 v{VT+2}, s{s_wave}, v{VT+2}")
e(f"v_lshlrev_b32 v{VT+2}, 12, v{VT+2}")
e(f"v_lshl_add_u32 v{v_dv}, v{VT+1}, 4, v{VT+2}")
e(f"v_and_b32 v{VT+3}, 1, v{VT}")
e(f"v_lshlrev_b32 v{VT+3}, 7, v{VT+3}")
e(f"v_xor_b32 v{v_dk}, v{v_dv}, v{VT+3}")
e(f"v_and_b32 v{VT+4}, 31, v{v_lane}")
e(f"v_lshrrev_b32 v{VT+5}, 5, v{v_lane}")
e(f"v_lshlrev_b32 v{VT+6}, 12, v{VT+4}")
e(f"v_lshl_add_u32 v{VT+6}, v{VT+5}, 7, v{VT+6}")
e(f"v_lshlrev_b32 v{v_h4}, 2, v{VT+5}")
e(f"v_and_b32 v{VT+7}, 7, v{VT+4}")
e(f"v_mul_u32_u24 v{v_kbase}, {KPAD}, v{VT+7}")
e(f"v_lshrrev_b32 v{VT+7}, 3, v{VT+4}")
e(f"v_lshl_add_u32 v{v_kbase}, v{VT+7}, 8, v{v_kbase}")
e(f"v_and_b32 v{VT+7}, 1, v{VT+7}")
e(f"v_xor_b32 v{VT+7}, v{VT+7}, v{VT+5}")
e(f"v_lshl_add_u32 v{v_kbase}, v{VT+7}, 7, v{v_kbase}")
e(f"v_bfe_u32 v{VT+7}, v{v_lane}, 2, 2")
e(f"v_add_u32 v{VT+7}, v{VT+7}, v{v_h4}")
e(f"v_mul_u32_u24 v{v_vbase}, {VPAD}, v{VT+7}")
e(f"v_and_b32 v{VT+7}, 1, v{v_lane}")
e(f"v_lshl_add_u32 v{v_vbase}, v{VT+7}, 5, v{v_vbase}")
e(f"v_bfe_u32 v{VT+7}, v{v_lane}, 4, 1")
e(f"v_lshl_add_u32 v{v_vbase}, v{VT+7}, 4, v{v_vbase}")
e(f"v_bfe_u32 v{VT+7}, v{v_lane}, 1, 1")
e(f"v_lshl_add_u32 v{v_vbase}, v{VT+7}, 3, v{v_vbase}")
e(f"v_add_u32 v{v_vbase}, {KBLK}, v{v_vbase}")
e(f"v_mov_b32 v{v_ninf}, 0xff800000")
e(f"v_mov_b32 v{v_l0}, 0")
e(f"v_mov_b32 v{v_l1}, 0")
def srd(dst, ptr, rowreg, endreg):
    e(f"s_lshl_b32 s{s_t}, s{rowreg}, 12")
    e(f"s_add_u32 s{s_t}, s{s_t}, s{s_head256}")
    e(f"s_add_u32 s{dst}, s{ptr}, s{s_t}")
    e(f"s_addc_u32 s{dst+1}, s{ptr+1}, 0")
    e(f"s_sub_i32 s{s_t}, s{endreg}, s{rowreg}")
    e(f"s_lshl_b32 s{s_t}, s{s_t}, 12")
    e(f"s_sub_i32 s{s_t}, s{s_t}, {4096-256}")
    e(f"s_max_i32 s{dst+2}, s{s_t}, 0")
    e(f"s_mov_b32 s{dst+3}, 0x00020000")
e("s_waitcnt lgkmcnt(0)")
srd(SRD_Q, S_Q, s_q0, s_qend)
for s in range(8):
    e(f"buffer_load_dwordx4 {vr(VQ+4*s,4)}, v{VT+6}, {sr(SRD_Q,4)}, 0 offen offset:{16*s}")
srd(SRD_KA, S_K, s_abase, s_aend)
srd(SRD_KB, S_K, s_bbase, s_bend)
srd(SRD_VA, S_V, s_abase, s_aend)
srd(SRD_VB, S_V, s_bbase, s_bend)
for n in range(RS):
    e(f"s_add_u32 m0, s{s_mk}, {n*STAGE}")
    e("s_nop 0")
    e(f"buffer_load_dwordx4 v{v_dk}, {sr(SRD_KA,4)}, s{s_dk} offen lds")
    e(f"s_add_u32 m0, s{s_mk}, {n*STAGE+BLK}")
    e("s_nop 0")
    e(f"buffer_load_dwordx4 v{v_dk}, {sr(SRD_KB,4)}, s{s_dk} offen lds")
    e(f"s_add_u32 m0, s{s_mv}, {n*STAGE}")
    e("s_nop 0")
    e(f"buffer_load_dwordx4 v{v_dv}, {sr(SRD_VA,4)}, s{s_dk} offen lds")
    e(f"s_add_u32 m0, s{s_mv}, {n*STAGE+BLK}")
    e(f"s_add_u32 s{s_t2}, s{s_dk}, s{s_strideB}")
    e(f"buffer_load_dwordx4 v{v_dv}, {sr(SRD_VB,4)}, s{s_dk} offen lds")
    e(f"s_cmp_ge_u32 s{s_t2}, s{s_span}")
    e(f"s_cselect_b32 s{s_t}, s{s_span}, 0")
    e(f"s_sub_u32 s{s_dk}, s{s_t2}, s{s_t}")
srd(SRD_O, S_O, s_q0, s_qend)
e(f"s_mov_b32 s{s_dks}, 0")
e(f"s_mov_b32 s{s_nk}, {RS}")
e(f"s_mov_b32 s{s_issued}, {2*RS}")
for k in range(64):
    e(f"v_mov_b32 v{VO+k}, 0")
e(f"v_add_u32 v{v_ka}, s{s_lk}, v{v_kbase}")
e("s_waitcnt vmcnt(14)")
e("s_barrier")
lg.reset()
kidx = [k_read(s) for s in range(8)]
for s in range(8):
    lg.need(kidx[s])
    qk_mfma(s)
advance_lds(s_lk)
e("s_nop 7")
e("s_nop 3")
mask_block("pre")
for x in max_chain():
    e(x)
e(f"v_mov_b32 v{v_m}, v{VT}")
e(f"v_mul_f32 v{v_mc}, s{s_c}, v{VT}")
e(f"v_add_f32 v{v_mthr}, {f2u(THR_RAW):#x}, v{VT}")
for x in fma_fillers():
    e(x)
advance_unit()
e(f"s_sub_u32 s{s_cnt}, s{s_cnt}, 1")

lab("L_loop")
e(f"s_sub_u32 s{s_t}, s{s_issued}, s{s_need}")
e(f"s_cmp_eq_u32 s{s_t}, 5")
e("s_cbranch_scc0 L_waitx")
e("s_waitcnt vmcnt(8)")
lab("L_waitdone")
wx = ["L_waitx:"]
for y in (6, 5, 3, 2, 1):
    wx.append(f"    s_cmp_ge_u32 s{s_t}, {y+1}")
    wx.append(f"    s_cbranch_scc0 L_wx{y}")
    wx.append(f"    s_waitcnt vmcnt({2*y})")
    wx.append("    s_branch L_waitdone")
    wx.append(f"L_wx{y}:")
wx.append("    s_waitcnt vmcnt(0)")
wx.append("    s_branch L_waitdone")
ool.append(wx)
e(f"v_add_u32 v{v_ka}, s{s_lk}, v{v_kbase}")
e(f"v_add_u32 v{v_va}, s{s_lv}, v{v_vbase}")
e("s_barrier")
lg.reset()
kidx = [k_read(s) for s in range(8)]
e(f"s_cmp_eq_u32 s{s_pv}, 0")
e("s_cbranch_scc1 L_nov")
e(f"s_add_u32 m0, s{s_pvslot}, s{s_mv}")
e(f"s_add_u32 s{s_issued}, s{s_issued}, 1")
e(f"buffer_load_dwordx4 v{v_dv}, {sr(SRD_VA,4)}, s{s_pvoff} offen lds")
e(f"s_add_u32 m0, m0, {BLK}")
e(f"s_mov_b32 s{s_pv}, 0")
e(f"buffer_load_dwordx4 v{v_dv}, {sr(SRD_VB,4)}, s{s_pvoff} offen lds")
lab("L_nov")
e(f"s_cmp_ge_u32 s{s_nk}, s{s_NS}")
e("s_cbranch_scc1 L_nok")
e(f"s_add_u32 m0, s{s_dks}, s{s_mk}")
e(f"s_add_u32 s{s_issued}, s{s_issued}, 1")
e(f"buffer_load_dwordx4 v{v_dk}, {sr(SRD_KA,4)}, s{s_dk} offen lds")
e(f"s_add_u32 m0, m0, {BLK}")
e(f"s_mov_b32 s{s_pv}, 1")
e(f"buffer_load_dwordx4 v{v_dk}, {sr(SRD_KB,4)}, s{s_dk} offen lds")
e(f"s_mov_b32 s{s_pvoff}, s{s_dk}")
e(f"s_mov_b32 s{s_pvslot}, s{s_dks}")
e(f"s_add_u32 s{s_nk}, s{s_nk}, 1")
e(f"s_add_u32 s{s_dk}, s{s_dk}, s{s_strideB}")
e(f"s_cmp_ge_u32 s{s_dk}, s{s_span}")
e(f"s_cselect_b32 s{s_t}, s{s_span}, 0")
e(f"s_sub_u32 s{s_dk}, s{s_dk}, s{s_t}")
e(f"s_add_u32 s{s_dks}, s{s_dks}, {STAGE}")
e(f"s_cmp_ge_u32 s{s_dks}, {RING}")
e(f"s_cselect_b32 s{s_t}, {RING}, 0")
e(f"s_sub_u32 s{s_dks}, s{s_dks}, s{s_t}")
lab("L_nok")
e(f"s_add_u32 s{s_need}, s{s_need}, s{s_needstep}")
advance_lds(s_lk)
advance_lds(s_lv)

vidx = {}
def mk_qk(s):
    def f():
        lg.need(kidx[s])
        qk_mfma(s)
    return f
def mk_vread(dt, t, jj):
    def f():
        vidx[(dt, t, jj)] = v_read(dt, t, jj)
    return f
ef = exp_fillers()
vlist = [mk_vread(dt, t, jj) for t in range(2) for dt in range(4) for jj in range(2)]
fill = []
vi = 0
for i, x in enumerate(ef):
    fill.append(x)
    if i >= 8 and vi < 14 and (i % 2 == 0):
        fill.append(vlist[vi]); vi += 1
while vi < 14:
    fill.append(vlist[vi]); vi += 1
interleave([mk_qk(s) for s in range(8)], fill, pre=6)

def mk_pv(dt, t):
    def f():
        lg.need(vidx[(dt, t, 1)])
        pv_mfma(dt, t)
    return f
pvs = [mk_pv(dt, t) for t in range(2) for dt in range(4)]
e("s_nop 1")
pvs[0](); vlist[14](); vlist[15](); pvs[1]()
e("s_nop 7")
e("s_nop 1")
mask_block("loop")
mc = max_chain()
pvs[2]()
for x in mc[:8]:
    e(x)
pvs[3]()
for x in mc[8:]:
    e(x)
e(f"v_cmp_gt_f32 vcc, v{VT}, v{v_mthr}")
e("s_cbranch_vccnz L_rare1")
lab("L_rare1done")
r1 = ["L_rare1:",
      f"    v_max_f32 v{VT}, v{VT}, v{v_m}",
      f"    v_sub_f32 v{VT+1}, v{v_m}, v{VT}",
      f"    v_mul_f32 v{VT+1}, s{s_c}, v{VT+1}",
      f"    v_exp_f32 v{v_f}, v{VT+1}",
      f"    v_mov_b32 v{v_m}, v{VT}",
      f"    v_mul_f32 v{v_mc}, s{s_c}, v{VT}",
      f"    v_add_f32 v{v_mthr}, {f2u(THR_RAW):#x}, v{VT}",
      f"    s_mov_b32 s{s_resc}, 1",
      "    s_branch L_rare1done"]
ool.append(r1)
interleave(pvs[4:], fma_fillers(), pre=0)
advance_unit()
e(f"s_cmp_eq_u32 s{s_resc}, 0")
e("s_cbranch_scc0 L_rare2")
lab("L_rare2done")
r2 = ["L_rare2:", "    s_nop 7", "    s_nop 7"]
for k in range(64):
    r2.append(f"    v_mul_f32 v{VO+k}, v{v_f}, v{VO+k}")
r2 += [f"    v_mul_f32 v{v_l0}, v{v_f}, v{v_l0}",
       f"    v_mul_f32 v{v_l1}, v{v_f}, v{v_l1}",
       f"    s_mov_b32 s{s_resc}, 0",
       "    s_branch L_rare2done"]
ool.append(r2)
e(f"s_sub_u32 s{s_cnt}, s{s_cnt}, 1")
e(f"s_cmp_lg_u32 s{s_cnt}, 0")
e("s_cbranch_scc1 L_loop")

e(f"v_add_u32 v{v_va}, s{s_lv}, v{v_vbase}")
e("s_waitcnt vmcnt(0)")
e("s_barrier")
lg.reset()
vidx = {}
for t in range(2):
    for dt in range(4):
        for jj in range(2):
            if lg.issued - lg.done >= 14:
                pass
            vidx[(dt, t, jj)] = None
order = [(dt, t, jj) for t in range(2) for dt in range(4) for jj in range(2)]
for k in order[:8]:
    vidx[k] = v_read(*k)
ef = exp_fillers()
for x in ef[:20]:
    e(x)
lg.need(vidx[order[1]])
for k in order[8:]:
    vidx[k] = v_read(*k)
for x in ef[20:]:
    e(x)
e("s_nop 1")
for t in range(2):
    for dt in range(4):
        lg.need(vidx[(dt, t, 1)])
        pv_mfma(dt, t)
e(f"v_add_f32 v{v_l0}, v{v_l0}, v{v_l1}")
e(f"v_mov_b32 v{v_l1}, v{v_l0}")
e("s_nop 1")
e(f"v_permlane32_swap_b32 v{v_l0}, v{v_l1}")
e(f"v_add_f32 v{v_l0}, v{v_l0}, v{v_l1}")
e("s_barrier")
TROW = 272
TBUF = 32 * TROW
XBASE = 8 * TBUF
XSZ = 8192 + 512
va_tw, va_tr, va_st, va_x = VT + 8, VT + 9, VT + 10, VT + 11
e(f"s_mul_i32 s{s_t}, s{s_wave}, {TBUF}")
e(f"v_and_b32 v{VT}, 31, v{v_lane}")
e(f"v_mul_u32_u24 v{va_tw}, {TROW}, v{VT}")
e(f"v_lshl_add_u32 v{va_tw}, v{v_h4}, 3, v{va_tw}")
e(f"v_add_u32 v{va_tw}, s{s_t}, v{va_tw}")
e(f"s_cmp_eq_u32 s{s_mode}, 0")
e("s_cbranch_scc1 L_comb")
e(f"v_lshrrev_b32 v{VT}, 4, v{v_lane}")
e(f"v_and_b32 v{VT+1}, 15, v{v_lane}")
e(f"v_mul_u32_u24 v{va_tr}, {TROW}, v{VT}")
e(f"v_lshl_add_u32 v{va_tr}, v{VT+1}, 4, v{va_tr}")
e(f"v_add_u32 v{va_tr}, s{s_t}, v{va_tr}")
e(f"v_lshlrev_b32 v{va_st}, 12, v{VT}")
e(f"v_lshl_add_u32 v{va_st}, v{VT+1}, 4, v{va_st}")
e(f"v_rcp_f32 v{v_f}, v{v_l0}")
e("s_nop 7")
for dt in range(4):
    for k in range(16):
        e(f"v_mul_f32 v{VO+16*dt+k}, v{v_f}, v{VO+16*dt+k}")
    for k in range(8):
        e(f"v_cvt_pk_bf16_f32 v{VKF+8*dt+k}, v{VO+16*dt+2*k}, v{VO+16*dt+2*k+1}")
    e(f"ds_write_b128 v{va_tw}, {vr(VKF+8*dt,4)} offset:{64*dt}")
    e(f"ds_write_b128 v{va_tw}, {vr(VKF+8*dt+4,4)} offset:{64*dt+16}")
e("s_waitcnt lgkmcnt(0)")
for it in range(8):
    e(f"ds_read_b128 {vr(VO+4*it,4)}, v{va_tr} offset:{4*TROW*it}")
for it in range(8):
    e(f"s_waitcnt lgkmcnt({7-it})")
    e(f"s_mov_b32 s{s_t2}, {4*ROWB*it}")
    e(f"buffer_store_dwordx4 {vr(VO+4*it,4)}, v{va_st}, {sr(SRD_O,4)}, s{s_t2} offen")
e("s_endpgm")
lab("L_comb")
e(f"s_mul_i32 s{s_t2}, s{s_wave}, {XSZ}")
e(f"s_add_u32 s{s_t2}, s{s_t2}, {XBASE}")
e(f"s_xor_b32 s{s_t3}, s{s_wave}, 4")
e(f"s_mul_i32 s{s_t3}, s{s_t3}, {XSZ}")
e(f"s_add_u32 s{s_t3}, s{s_t3}, {XBASE}")
e(f"v_lshlrev_b32 v{VT}, 4, v{v_lane}")
e(f"v_add_u32 v{va_x}, s{s_t2}, v{VT}")
e(f"v_add_u32 v{VT+1}, s{s_t3}, v{VT}")
e(f"v_lshlrev_b32 v{VT+2}, 3, v{v_lane}")
e(f"v_add_u32 v{VT+3}, s{s_t3}, v{VT+2}")
e(f"v_add_u32 v{VT+2}, s{s_t2}, v{VT+2}")
e(f"v_mov_b32 v{VT+4}, v{v_m}")
e(f"v_mov_b32 v{VT+5}, v{v_l0}")
e("s_nop 7")
e(f"ds_write_b64 v{VT+2}, {vr(VT+4,2)} offset:8192")
e(f"s_cmp_eq_u32 s{s_grp}, 0")
e("s_cbranch_scc0 L_combB")
for k in range(8):
    e(f"ds_write_b128 v{va_x}, {vr(VO+32+4*k,4)} offset:{1024*k}")
e("s_waitcnt lgkmcnt(0)")
e("s_barrier")
e(f"ds_read_b64 {vr(VT+6,2)}, v{VT+3} offset:8192")
for k in range(8):
    e(f"ds_read_b128 {vr(VO+32+4*k,4)}, v{VT+1} offset:{1024*k}")
e("s_branch L_combJ")
lab("L_combB")
for k in range(8):
    e(f"ds_write_b128 v{va_x}, {vr(VO+4*k,4)} offset:{1024*k}")
e("s_waitcnt lgkmcnt(0)")
e("s_barrier")
e(f"ds_read_b64 {vr(VT+6,2)}, v{VT+3} offset:8192")
for k in range(8):
    e(f"ds_read_b128 {vr(VO+4*k,4)}, v{VT+1} offset:{1024*k}")
lab("L_combJ")
e(f"v_lshrrev_b32 v{VT}, 3, v{v_lane}")
e(f"v_and_b32 v{VT+1}, 7, v{v_lane}")
e(f"v_mul_u32_u24 v{va_tr}, {TROW}, v{VT}")
e(f"v_lshl_add_u32 v{va_tr}, v{VT+1}, 4, v{va_tr}")
e(f"v_add_u32 v{va_tr}, s{s_t}, v{va_tr}")
e(f"v_lshlrev_b32 v{va_st}, 12, v{VT}")
e(f"v_lshl_add_u32 v{va_st}, v{VT+1}, 4, v{va_st}")
e(f"s_lshl_b32 s{s_t3}, s{s_grp}, 7")
e(f"v_add_u32 v{va_st}, s{s_t3}, v{va_st}")
e("s_waitcnt lgkmcnt(8)")
e(f"v_max_f32 v{VT}, v{v_m}, v{VT+6}")
e(f"v_sub_f32 v{VT+1}, v{v_m}, v{VT}")
e(f"v_sub_f32 v{VT+2}, v{VT+6}, v{VT}")
e(f"v_mul_f32 v{VT+1}, s{s_c}, v{VT+1}")
e(f"v_mul_f32 v{VT+2}, s{s_c}, v{VT+2}")
e(f"v_exp_f32 v{VT+1}, v{VT+1}")
e(f"v_exp_f32 v{VT+2}, v{VT+2}")
e("s_nop 0")
e(f"v_mul_f32 v{VT+3}, v{VT+1}, v{v_l0}")
e(f"v_fma_f32 v{VT+3}, v{VT+2}, v{VT+7}, v{VT+3}")
e(f"v_rcp_f32 v{VT+3}, v{VT+3}")
e("s_nop 0")
e(f"v_mul_f32 v{VT+1}, v{VT+1}, v{VT+3}")
e(f"v_mul_f32 v{VT+2}, v{VT+2}, v{VT+3}")
e(f"s_cmp_eq_u32 s{s_grp}, 0")
e(f"s_cselect_b64 vcc, -1, 0")
e("s_nop 1")
e(f"v_cndmask_b32 v{VT+4}, v{VT+2}, v{VT+1}, vcc")
e(f"v_cndmask_b32 v{VT+5}, v{VT+1}, v{VT+2}, vcc")
e("s_waitcnt lgkmcnt(0)")
for dt in range(2):
    for k in range(16):
        e(f"v_mul_f32 v{VS+k}, v{VT+4}, v{VO+16*dt+k}")
    for k in range(16):
        e(f"v_fma_f32 v{VS+k}, v{VT+5}, v{VO+32+16*dt+k}, v{VS+k}")
    for k in range(8):
        e(f"v_cvt_pk_bf16_f32 v{VKF+8*dt+k}, v{VS+2*k}, v{VS+2*k+1}")
    e(f"ds_write_b128 v{va_tw}, {vr(VKF+8*dt,4)} offset:{64*dt}")
    e(f"ds_write_b128 v{va_tw}, {vr(VKF+8*dt+4,4)} offset:{64*dt+16}")
e("s_waitcnt lgkmcnt(0)")
for it in range(4):
    e(f"ds_read_b128 {vr(VVF+4*it,4)}, v{va_tr} offset:{8*TROW*it}")
for it in range(4):
    e(f"s_waitcnt lgkmcnt({3-it})")
    e(f"s_mov_b32 s{s_t2}, {8*ROWB*it}")
    e(f"buffer_store_dwordx4 {vr(VVF+4*it,4)}, v{va_st}, {sr(SRD_O,4)}, s{s_t2} offen")
lab("L_end")
e("s_endpgm")
for b in ool:
    out.extend(b)
out.append('.section .rodata,"a"')
out.append(".p2align 6")
out.append(f".amdhsa_kernel {NAME}_kernel")
out.append(f"  .amdhsa_next_free_vgpr {NVGPR}")
out.append("  .amdhsa_next_free_sgpr 96")
out.append(f"  .amdhsa_accum_offset {NVGPR}")
out.append("  .amdhsa_group_segment_fixed_size 0")
out.append("  .amdhsa_kernarg_size 56")
out.append("  .amdhsa_user_sgpr_count 2")
out.append("  .amdhsa_user_sgpr_kernarg_segment_ptr 1")
out.append("  .amdhsa_system_sgpr_workgroup_id_x 1")
out.append(".end_amdhsa_kernel")

dst = sys.argv[1] if len(sys.argv) > 1 else f"cdna_kernels/{NAME}.s"
open(dst, "w").write("\n".join(out) + "\n")
print("wrote", dst, len(out), "lines")
```

```python
import sys, math

NAME = "standalone__ragged_sequences_packed_sequences__ragged"
T, H, D = 2266, 16, 128
ROWB = 4096
KPAD, VPAD = 1040, 1088
KBLK, VBLK = 8 * KPAD, 8 * VPAD
BLK = KBLK + VBLK
STAGE = 2 * BLK
RS = 4
RING = RS * STAGE
LDS_BYTES = 139264
CSCALE = (D ** -0.5) * math.log2(math.e)
THR_RAW = 8.0 / CSCALE

import struct
def f2u(x):
    return struct.unpack("<I", struct.pack("<f", x))[0]

jobs = []
for j in range(4):
    jobs.append((964, 1456, 8, 2 * j, 964 + 128 * j, min(964 + 128 * (j + 1), 1456), 0))
for qo, qe, s0 in zip((0, 128, 256, 352), (128, 256, 352, 448), (0, 2, 4, 5)):
    jobs.append((516, 964, 7, s0, 516 + qo, 516 + qe, 0))
for qo, qe, s0 in zip((0, 128, 224, 320), (128, 224, 320, 400), (0, 2, 4, 5)):
    jobs.append((0, 400, 7, s0, qo, qe, 0))
jobs.append((1456, 1702, 4, 0, 1456, 1702, 1))
jobs.append((2021, 2266, 4, 0, 2021, 2266, 1))
jobs.append((1702, 1900, 4, 0, 1702, 1900, 1))
jobs.append((400, 516, 4, 0, 400, 516, 2))
DUAL_B = (1900, 2021)
assert len(jobs) == 16

import os
DIAG = int(os.environ.get("DIAG", "0"))
out = []
NSTAMP = 0
def stamp(real=False):
    if not DIAG: return
    op = "s_memrealtime" if real else "s_memtime"
    e(f"{op} s[82:83]")
    e("s_waitcnt lgkmcnt(0)")
    e("s_mov_b32 m0, s84"); e("v_writelane_b32 v231, s82, m0")
    e("s_add_u32 s84, s84, 1")
def dump_stamps():
    if not DIAG: return
    e("s_load_dwordx2 s[82:83], s[0:1], 48")
    e("s_waitcnt lgkmcnt(0)")
    e(f"s_lshl_b32 s{s_t}, s2, 3")
    e(f"s_add_u32 s{s_t}, s{s_t}, s{s_wave}")
    e(f"s_lshl_b32 s{s_t}, s{s_t}, 8")
    e(f"s_add_u32 s82, s82, s{s_t}")
    e("s_addc_u32 s83, s83, 0")
    e(f"v_lshlrev_b32 v0, 2, v{v_lane}")
    e(f"global_store_dword v0, v231, s[82:83]")
def e(s=""):
    out.append("    " + s if s and not s.endswith(":") else s)
def lab(s):
    out.append(s + ":")

S_Q, S_K, S_V, S_O = 4, 6, 8, 12
SRD_Q, SRD_KA, SRD_KB, SRD_VA, SRD_VB, SRD_O = 16, 20, 24, 28, 32, 36
s_w0, s_w1 = 40, 41
s_abase, s_aend, s_bbase, s_bend = 42, 43, 44, 45
s_NS, s_sig0, s_mode = 46, 47, 48
s_wave, s_grp, s_head256 = 49, 50, 51
s_q0, s_qend = 52, 53
s_strideB, s_span = 54, 55
s_mk, s_mv = 56, 57
s_dk, s_dks, s_nk, s_pv, s_pvoff, s_pvslot = 58, 59, 60, 61, 62, 63
s_issued, s_need, s_needstep = 64, 65, 66
s_lk, s_lv, s_lstep = 67, 68, 69
s_uoff, s_ustep, s_uspan, s_rows = 70, 71, 72, 73
s_kv, s_cnt, s_resc = 74, 75, 76
s_c, s_t, s_t2, s_t3 = 77, 78, 79, 80
s_job = 81
v_lane, v_h4, v_kbase, v_vbase, v_ka, v_va, v_dk, v_dv = 1, 2, 3, 4, 5, 6, 7, 8
v_m, v_mc, v_mthr, v_l0, v_l1, v_f, v_ninf = 9, 10, 11, 12, 13, 14, 15
VQ, VO, VS, VX, VP, VKF, VVF, VT = 16, 48, 112, 128, 144, 152, 184, 216
NVGPR = 232

def vr(b, n):
    return f"v[{b}:{b+n-1}]"
def sr(b, n):
    return f"s[{b}:{b+n-1}]"

class Lgkm:
    def __init__(self):
        self.issued = 0
        self.done = 0
    def issue(self):
        self.issued += 1
        assert self.issued - self.done <= 15, "too many LDS ops outstanding"
        return self.issued - 1
    def need(self, idx):
        if idx >= self.done:
            n = self.issued - idx - 1
            e(f"s_waitcnt lgkmcnt({n})")
            self.done = idx + 1
    def reset(self):
        self.issued = 0; self.done = 0

lg = Lgkm()

XP = os.environ.get("XP", "")
def k_read(s):
    if "nok" in XP and INLOOP:
        e("s_nop 0"); return -1
    e(f"ds_read_b128 {vr(VKF+4*s,4)}, v{v_ka} offset:{16*s}")
    return lg.issue()
INLOOP = False
def v_read(dt, t, jj):
    if "nov" in XP and INLOOP:
        e("s_nop 0"); return -1
    e(f"ds_read_b64_tr_b16 {vr(VVF+(dt*2+t)*4+jj*2,2)}, v{v_va} offset:{(2*t+jj)*256+64*dt}")
    return lg.issue()
def qk_mfma(s):
    if "nomfma" in XP and INLOOP:
        e("s_nop 0"); return
    c = "0" if s == 0 else vr(VS, 16)
    e(f"v_mfma_f32_32x32x16_bf16 {vr(VS,16)}, {vr(VKF+4*s,4)}, {vr(VQ+4*s,4)}, {c}")
def pv_mfma(dt, t):
    if "nomfma" in XP and INLOOP:
        e("s_nop 0"); return
    e(f"v_mfma_f32_32x32x16_bf16 {vr(VO+16*dt,16)}, {vr(VVF+(dt*2+t)*4,4)}, {vr(VP+4*t,4)}, {vr(VO+16*dt,16)}")

def exp_fillers():
    f = []
    for k in range(0, 16, 2):
        op = "v_mov_b32" if ("noexp" in XP and INLOOP) else "v_exp_f32"
        f.append(f"{op} v{VX+k}, v{VX+k}")
        f.append(f"{op} v{VX+k+1}, v{VX+k+1}")
        if k >= 2:
            f.append(f"v_add_f32 v{v_l0}, v{v_l0}, v{VX+k-2}")
            f.append(f"v_add_f32 v{v_l1}, v{v_l1}, v{VX+k-1}")
            f.append(f"v_cvt_pk_bf16_f32 v{VP+(k-2)//2}, v{VX+k-2}, v{VX+k-1}")
    f.append("s_nop 0")
    f.append(f"v_add_f32 v{v_l0}, v{v_l0}, v{VX+14}")
    f.append(f"v_add_f32 v{v_l1}, v{v_l1}, v{VX+15}")
    f.append(f"v_cvt_pk_bf16_f32 v{VP+7}, v{VX+14}, v{VX+15}")
    return f

def max_chain():
    t = VT
    f = [
        f"v_max3_f32 v{t}, v{VS+0}, v{VS+1}, v{VS+2}",
        f"v_max3_f32 v{t+1}, v{VS+3}, v{VS+4}, v{VS+5}",
        f"v_max3_f32 v{t+2}, v{VS+6}, v{VS+7}, v{VS+8}",
        f"v_max3_f32 v{t+3}, v{VS+9}, v{VS+10}, v{VS+11}",
        f"v_max3_f32 v{t+4}, v{VS+12}, v{VS+13}, v{VS+14}",
        f"v_max3_f32 v{t}, v{t}, v{t+1}, v{VS+15}",
        f"v_max3_f32 v{t+2}, v{t+2}, v{t+3}, v{t+4}",
        f"v_max_f32 v{t}, v{t}, v{t+2}",
        f"v_mov_b32 v{t+1}, v{t}",
        "s_nop 1",
        f"v_permlane32_swap_b32 v{t}, v{t+1}",
        f"v_max_f32 v{t}, v{t}, v{t+1}",
    ]
    return f

def fma_fillers():
    return [f"v_fma_f32 v{VX+k}, v{VS+k}, s{s_c}, -v{v_mc}" for k in range(16)]

ool = []
def mask_block(tag):
    b = [f"L_mask_{tag}:"]
    for r in range(16):
        c = (r & 3) + 8 * (r >> 2)
        b.append(f"    s_sub_i32 s{s_t}, s{s_kv}, {c}")
        b.append(f"    v_cmp_gt_i32 vcc, s{s_t}, v{v_h4}")
        b.append("    s_nop 1")
        b.append(f"    v_cndmask_b32 v{VS+r}, v{v_ninf}, v{VS+r}, vcc")
    b.append(f"    s_branch L_maskdone_{tag}")
    ool.append(b)
    e(f"s_cmp_lt_i32 s{s_kv}, 32")
    e(f"s_cbranch_scc1 L_mask_{tag}")
    lab(f"L_maskdone_{tag}")

def advance_unit():
    e(f"s_add_u32 s{s_uoff}, s{s_uoff}, s{s_ustep}")
    e(f"s_cmp_ge_u32 s{s_uoff}, s{s_uspan}")
    e(f"s_cselect_b32 s{s_t}, s{s_uspan}, 0")
    e(f"s_sub_u32 s{s_uoff}, s{s_uoff}, s{s_t}")
    e(f"s_sub_i32 s{s_kv}, s{s_rows}, s{s_uoff}")

def advance_lds(reg):
    e(f"s_add_u32 s{reg}, s{reg}, s{s_lstep}")
    e(f"s_cmp_ge_u32 s{reg}, {RING}")
    e(f"s_cselect_b32 s{s_t}, {RING}, 0")
    e(f"s_sub_u32 s{reg}, s{reg}, s{s_t}")

def interleave(mf, fillers, pre=0):
    def emit(x):
        if callable(x): x()
        else: e(x)
    fi = 0
    for _ in range(pre):
        emit(fillers[fi]); fi += 1
    rest = len(fillers) - fi
    n = len(mf)
    for i, m in enumerate(mf):
        m()
        upto = pre + (rest * (i + 1)) // n
        while fi < upto:
            emit(fillers[fi]); fi += 1

out.append(f"; @launch grid=(256,1,1) block=(512,1,1) lds={LDS_BYTES}")
out.append('.amdgcn_target "amdgcn-amd-amdhsa--gfx950"')
out.append(".text")
out.append(f".globl {NAME}_kernel")
out.append(".p2align 8")
out.append(f".type {NAME}_kernel,@function")
lab(f"{NAME}_kernel")
e("s_cmp_ge_u32 s2, 256")
e("s_cbranch_scc1 L_end")
if DIAG:
    e("s_mov_b32 s84, 0"); e("v_mov_b32 v231, 0")
stamp(True); stamp()
e("s_load_dwordx8 s[4:11], s[0:1], 0")
e("s_load_dwordx2 s[12:13], s[0:1], 32")
e(f"v_lshrrev_b32 v{VT}, 6, v0")
e(f"v_and_b32 v{v_lane}, 63, v0")
e(f"v_readfirstlane_b32 s{s_wave}, v{VT}")
e(f"s_and_b32 s{s_t}, s2, 7")
e(f"s_lshl_b32 s{s_t}, s{s_t}, 1")
e(f"s_bfe_u32 s{s_t2}, s2, 0x10003")
e(f"s_add_u32 s{s_t}, s{s_t}, s{s_t2}")
e(f"s_lshl_b32 s{s_head256}, s{s_t}, 8")
e(f"s_lshr_b32 s{s_job}, s2, 4")
def pack(j):
    a, b, ns, s0, q, qe, mode = jobs[j]
    w0 = a | (b << 12) | (ns << 24) | (s0 << 28)
    w1 = q | (qe << 12) | (mode << 24)
    return w0, w1
w0, w1 = pack(0)
e(f"s_mov_b32 s{s_w0}, {w0:#x}")
e(f"s_mov_b32 s{s_w1}, {w1:#x}")
for j in range(1, 16):
    w0, w1 = pack(j)
    e(f"s_cmp_eq_u32 s{s_job}, {j}")
    e(f"s_cselect_b32 s{s_w0}, {w0:#x}, s{s_w0}")
    e(f"s_cselect_b32 s{s_w1}, {w1:#x}, s{s_w1}")
e(f"s_and_b32 s{s_abase}, s{s_w0}, 0xfff")
e(f"s_bfe_u32 s{s_aend}, s{s_w0}, 0xc000c")
e(f"s_bfe_u32 s{s_NS}, s{s_w0}, 0x40018")
e(f"s_lshr_b32 s{s_sig0}, s{s_w0}, 28")
e(f"s_and_b32 s{s_q0}, s{s_w1}, 0xfff")
e(f"s_bfe_u32 s{s_qend}, s{s_w1}, 0xc000c")
e(f"s_lshr_b32 s{s_mode}, s{s_w1}, 24")
e(f"s_lshr_b32 s{s_grp}, s{s_wave}, 2")
e(f"s_add_u32 s{s_bbase}, s{s_abase}, 32")
e(f"s_mov_b32 s{s_bend}, s{s_aend}")
e(f"s_mov_b32 s{s_strideB}, {64*ROWB}")
e(f"s_cmp_eq_u32 s{s_mode}, 2")
e(f"s_cselect_b32 s{s_bbase}, {DUAL_B[0]}, s{s_bbase}")
e(f"s_cselect_b32 s{s_bend}, {DUAL_B[1]}, s{s_bend}")
e(f"s_cselect_b32 s{s_strideB}, {32*ROWB}, s{s_strideB}")
e(f"s_mul_i32 s{s_span}, s{s_strideB}, s{s_NS}")
e(f"s_and_b32 s{s_t}, s{s_wave}, 3")
e(f"s_cmp_eq_u32 s{s_mode}, 1")
e(f"s_cselect_b32 s{s_t}, s{s_wave}, s{s_t}")
e(f"s_lshl_b32 s{s_t}, s{s_t}, 5")
e(f"s_lshl_b32 s{s_t2}, s{s_grp}, 2")
e(f"s_add_u32 s{s_t2}, s{s_t2}, s{s_mode}")
e(f"s_cmp_eq_u32 s{s_t2}, 6")
e(f"s_cselect_b32 s{s_q0}, {DUAL_B[0]}, s{s_q0}")
e(f"s_cselect_b32 s{s_qend}, {DUAL_B[1]}, s{s_qend}")
e(f"s_add_u32 s{s_q0}, s{s_q0}, s{s_t}")
e(f"s_sub_u32 s{s_rows}, s{s_aend}, s{s_abase}")
e(f"s_sub_u32 s{s_t}, s{s_bend}, s{s_bbase}")
e(f"s_cmp_eq_u32 s{s_t2}, 4")
e(f"s_cselect_b32 s{s_rows}, s{s_t}, s{s_rows}")
e(f"s_cmp_eq_u32 s{s_t2}, 6")
e(f"s_cselect_b32 s{s_rows}, s{s_t}, s{s_rows}")
e(f"s_lshr_b32 s{s_ustep}, s{s_strideB}, 12")
e(f"s_lshr_b32 s{s_uspan}, s{s_span}, 12")
e(f"s_mul_i32 s{s_uoff}, s{s_ustep}, s{s_sig0}")
e(f"s_mul_i32 s{s_lk}, s{s_grp}, {BLK}")
e(f"s_mov_b32 s{s_lstep}, {STAGE}")
e(f"s_mov_b32 s{s_cnt}, s{s_NS}")
e(f"s_mov_b32 s{s_needstep}, 2")
e(f"s_mov_b32 s{s_need}, 2")
e(f"s_add_u32 s{s_t}, s{s_rows}, 31")
e(f"s_lshr_b32 s{s_t}, s{s_t}, 5")
e(f"s_cmp_eq_u32 s{s_mode}, 1")
e(f"s_cselect_b32 s{s_ustep}, 32, s{s_ustep}")
e(f"s_cselect_b32 s{s_uspan}, 0x10000, s{s_uspan}")
e(f"s_cselect_b32 s{s_lk}, 0, s{s_lk}")
e(f"s_cselect_b32 s{s_lstep}, {BLK}, s{s_lstep}")
e(f"s_cselect_b32 s{s_cnt}, s{s_t}, s{s_cnt}")
e(f"s_cselect_b32 s{s_needstep}, 1, s{s_needstep}")
e(f"s_cselect_b32 s{s_need}, 1, s{s_need}")
e(f"s_sub_i32 s{s_kv}, s{s_rows}, s{s_uoff}")
e(f"s_mov_b32 s{s_lv}, s{s_lk}")
e(f"s_mul_i32 s{s_mk}, s{s_wave}, {KPAD}")
e(f"s_mul_i32 s{s_mv}, s{s_wave}, {VPAD}")
e(f"s_add_u32 s{s_mv}, s{s_mv}, {KBLK}")
e(f"s_mul_i32 s{s_dk}, s{s_strideB}, s{s_sig0}")
e(f"s_mov_b32 s{s_c}, {f2u(CSCALE):#x}")
e(f"s_mov_b32 s{s_resc}, 0")
e(f"s_mov_b32 s{s_pv}, 0")
e(f"v_lshrrev_b32 v{VT}, 4, v{v_lane}")
e(f"v_and_b32 v{VT+1}, 15, v{v_lane}")
e(f"v_lshlrev_b32 v{VT+2}, 3, v{VT}")
e(f"v_add_u32 v{VT+2}, s{s_wave}, v{VT+2}")
e(f"v_lshlrev_b32 v{VT+2}, 12, v{VT+2}")
e(f"v_lshl_add_u32 v{v_dv}, v{VT+1}, 4, v{VT+2}")
e(f"v_and_b32 v{VT+3}, 1, v{VT}")
e(f"v_lshlrev_b32 v{VT+3}, 7, v{VT+3}")
e(f"v_xor_b32 v{v_dk}, v{v_dv}, v{VT+3}")
e(f"v_and_b32 v{VT+4}, 31, v{v_lane}")
e(f"v_lshrrev_b32 v{VT+5}, 5, v{v_lane}")
e(f"v_lshlrev_b32 v{VT+6}, 12, v{VT+4}")
e(f"v_lshl_add_u32 v{VT+6}, v{VT+5}, 7, v{VT+6}")
e(f"v_lshlrev_b32 v{v_h4}, 2, v{VT+5}")
e(f"v_and_b32 v{VT+7}, 7, v{VT+4}")
e(f"v_mul_u32_u24 v{v_kbase}, {KPAD}, v{VT+7}")
e(f"v_lshrrev_b32 v{VT+7}, 3, v{VT+4}")
e(f"v_lshl_add_u32 v{v_kbase}, v{VT+7}, 8, v{v_kbase}")
e(f"v_and_b32 v{VT+7}, 1, v{VT+7}")
e(f"v_xor_b32 v{VT+7}, v{VT+7}, v{VT+5}")
e(f"v_lshl_add_u32 v{v_kbase}, v{VT+7}, 7, v{v_kbase}")
e(f"v_bfe_u32 v{VT+7}, v{v_lane}, 2, 2")
e(f"v_add_u32 v{VT+7}, v{VT+7}, v{v_h4}")
e(f"v_mul_u32_u24 v{v_vbase}, {VPAD}, v{VT+7}")
e(f"v_and_b32 v{VT+7}, 1, v{v_lane}")
e(f"v_lshl_add_u32 v{v_vbase}, v{VT+7}, 5, v{v_vbase}")
e(f"v_bfe_u32 v{VT+7}, v{v_lane}, 4, 1")
e(f"v_lshl_add_u32 v{v_vbase}, v{VT+7}, 4, v{v_vbase}")
e(f"v_bfe_u32 v{VT+7}, v{v_lane}, 1, 1")
e(f"v_lshl_add_u32 v{v_vbase}, v{VT+7}, 3, v{v_vbase}")
e(f"v_add_u32 v{v_vbase}, {KBLK}, v{v_vbase}")
e(f"v_mov_b32 v{v_ninf}, 0xff800000")
e(f"v_mov_b32 v{v_l0}, 0")
e(f"v_mov_b32 v{v_l1}, 0")
def srd(dst, ptr, rowreg, endreg):
    e(f"s_lshl_b32 s{s_t}, s{rowreg}, 12")
    e(f"s_add_u32 s{s_t}, s{s_t}, s{s_head256}")
    e(f"s_add_u32 s{dst}, s{ptr}, s{s_t}")
    e(f"s_addc_u32 s{dst+1}, s{ptr+1}, 0")
    e(f"s_sub_i32 s{s_t}, s{endreg}, s{rowreg}")
    e(f"s_lshl_b32 s{s_t}, s{s_t}, 12")
    e(f"s_sub_i32 s{s_t}, s{s_t}, {4096-256}")
    e(f"s_max_i32 s{dst+2}, s{s_t}, 0")
    e(f"s_mov_b32 s{dst+3}, 0x00020000")
e("s_waitcnt lgkmcnt(0)")
stamp()
srd(SRD_Q, S_Q, s_q0, s_qend)
for s in range(8):
    e(f"buffer_load_dwordx4 {vr(VQ+4*s,4)}, v{VT+6}, {sr(SRD_Q,4)}, 0 offen offset:{16*s}")
srd(SRD_KA, S_K, s_abase, s_aend)
srd(SRD_KB, S_K, s_bbase, s_bend)
srd(SRD_VA, S_V, s_abase, s_aend)
srd(SRD_VB, S_V, s_bbase, s_bend)
for n in range(RS):
    e(f"s_add_u32 m0, s{s_mk}, {n*STAGE}")
    e("s_nop 0")
    e(f"buffer_load_dwordx4 v{v_dk}, {sr(SRD_KA,4)}, s{s_dk} offen lds")
    e(f"s_add_u32 m0, s{s_mk}, {n*STAGE+BLK}")
    e("s_nop 0")
    e(f"buffer_load_dwordx4 v{v_dk}, {sr(SRD_KB,4)}, s{s_dk} offen lds")
    e(f"s_add_u32 m0, s{s_mv}, {n*STAGE}")
    e("s_nop 0")
    e(f"buffer_load_dwordx4 v{v_dv}, {sr(SRD_VA,4)}, s{s_dk} offen lds")
    e(f"s_add_u32 m0, s{s_mv}, {n*STAGE+BLK}")
    e(f"s_add_u32 s{s_t2}, s{s_dk}, s{s_strideB}")
    e(f"buffer_load_dwordx4 v{v_dv}, {sr(SRD_VB,4)}, s{s_dk} offen lds")
    e(f"s_cmp_ge_u32 s{s_t2}, s{s_span}")
    e(f"s_cselect_b32 s{s_t}, s{s_span}, 0")
    e(f"s_sub_u32 s{s_dk}, s{s_t2}, s{s_t}")
srd(SRD_O, S_O, s_q0, s_qend)
e(f"s_mov_b32 s{s_dks}, 0")
e(f"s_mov_b32 s{s_nk}, {RS}")
e(f"s_mov_b32 s{s_issued}, {2*RS}")
for k in range(64):
    e(f"v_mov_b32 v{VO+k}, 0")
e(f"v_add_u32 v{v_ka}, s{s_lk}, v{v_kbase}")
stamp()
e("s_waitcnt vmcnt(14)")
e("s_barrier")
stamp()
lg.reset()
kidx = [k_read(s) for s in range(8)]
for s in range(8):
    lg.need(kidx[s])
    qk_mfma(s)
advance_lds(s_lk)
e("s_nop 7")
e("s_nop 3")
mask_block("pre")
for x in max_chain():
    e(x)
e(f"v_mov_b32 v{v_m}, v{VT}")
e(f"v_mul_f32 v{v_mc}, s{s_c}, v{VT}")
e(f"v_add_f32 v{v_mthr}, {f2u(THR_RAW):#x}, v{VT}")
for x in fma_fillers():
    e(x)
advance_unit()
e(f"s_sub_u32 s{s_cnt}, s{s_cnt}, 1")

stamp()
lab("L_loop")
INLOOP = True
e(f"s_sub_u32 s{s_t}, s{s_issued}, s{s_need}")
e(f"s_cmp_eq_u32 s{s_t}, 5")
e("s_cbranch_scc0 L_waitx")
e("s_waitcnt vmcnt(8)")
lab("L_waitdone")
wx = ["L_waitx:"]
for y in (6, 5, 3, 2, 1):
    wx.append(f"    s_cmp_ge_u32 s{s_t}, {y+1}")
    wx.append(f"    s_cbranch_scc0 L_wx{y}")
    wx.append(f"    s_waitcnt vmcnt({2*y})")
    wx.append("    s_branch L_waitdone")
    wx.append(f"L_wx{y}:")
wx.append("    s_waitcnt vmcnt(0)")
wx.append("    s_branch L_waitdone")
ool.append(wx)
e(f"v_add_u32 v{v_ka}, s{s_lk}, v{v_kbase}")
e(f"v_add_u32 v{v_va}, s{s_lv}, v{v_vbase}")
if DIAG >= 2: stamp()
e("s_barrier")
if DIAG >= 2: stamp()
lg.reset()
kidx = [k_read(s) for s in range(8)]
e(f"s_cmp_eq_u32 s{s_pv}, 0")
e("s_cbranch_scc1 L_nov")
e(f"s_add_u32 m0, s{s_pvslot}, s{s_mv}")
e(f"s_add_u32 s{s_issued}, s{s_issued}, 1")
e(f"buffer_load_dwordx4 v{v_dv}, {sr(SRD_VA,4)}, s{s_pvoff} offen lds")
e(f"s_add_u32 m0, m0, {BLK}")
e(f"s_mov_b32 s{s_pv}, 0")
e(f"buffer_load_dwordx4 v{v_dv}, {sr(SRD_VB,4)}, s{s_pvoff} offen lds")
lab("L_nov")
e(f"s_cmp_ge_u32 s{s_nk}, s{s_NS}")
e("s_cbranch_scc1 L_nok")
e(f"s_add_u32 m0, s{s_dks}, s{s_mk}")
e(f"s_add_u32 s{s_issued}, s{s_issued}, 1")
e(f"buffer_load_dwordx4 v{v_dk}, {sr(SRD_KA,4)}, s{s_dk} offen lds")
e(f"s_add_u32 m0, m0, {BLK}")
e(f"s_mov_b32 s{s_pv}, 1")
e(f"buffer_load_dwordx4 v{v_dk}, {sr(SRD_KB,4)}, s{s_dk} offen lds")
e(f"s_mov_b32 s{s_pvoff}, s{s_dk}")
e(f"s_mov_b32 s{s_pvslot}, s{s_dks}")
e(f"s_add_u32 s{s_nk}, s{s_nk}, 1")
e(f"s_add_u32 s{s_dk}, s{s_dk}, s{s_strideB}")
e(f"s_cmp_ge_u32 s{s_dk}, s{s_span}")
e(f"s_cselect_b32 s{s_t}, s{s_span}, 0")
e(f"s_sub_u32 s{s_dk}, s{s_dk}, s{s_t}")
e(f"s_add_u32 s{s_dks}, s{s_dks}, {STAGE}")
e(f"s_cmp_ge_u32 s{s_dks}, {RING}")
e(f"s_cselect_b32 s{s_t}, {RING}, 0")
e(f"s_sub_u32 s{s_dks}, s{s_dks}, s{s_t}")
lab("L_nok")
e(f"s_add_u32 s{s_need}, s{s_need}, s{s_needstep}")
advance_lds(s_lk)
advance_lds(s_lv)

if DIAG >= 3: stamp()
vidx = {}
def mk_qk(s):
    def f():
        lg.need(kidx[s])
        qk_mfma(s)
    return f
def mk_vread(dt, t, jj):
    def f():
        vidx[(dt, t, jj)] = v_read(dt, t, jj)
    return f
ef = exp_fillers()
vlist = [mk_vread(dt, t, jj) for t in range(2) for dt in range(4) for jj in range(2)]
fill = []
vi = 0
for i, x in enumerate(ef):
    fill.append(x)
    if i >= 8 and vi < 14 and (i % 2 == 0):
        fill.append(vlist[vi]); vi += 1
while vi < 14:
    fill.append(vlist[vi]); vi += 1
interleave([mk_qk(s) for s in range(8)], fill, pre=6)

if DIAG >= 3: stamp(); lg.done = lg.issued
def mk_pv(dt, t):
    def f():
        lg.need(vidx[(dt, t, 1)])
        pv_mfma(dt, t)
    return f
pvs = [mk_pv(dt, t) for t in range(2) for dt in range(4)]
e("s_nop 1")
pvs[0](); vlist[14](); vlist[15](); pvs[1]()
e("s_nop 7")
e("s_nop 1")
mask_block("loop")
mc = max_chain()
pvs[2]()
for x in mc[:8]:
    e(x)
pvs[3]()
for x in mc[8:]:
    e(x)
e(f"v_cmp_gt_f32 vcc, v{VT}, v{v_mthr}")
e("s_cbranch_vccnz L_rare1")
lab("L_rare1done")
r1 = ["L_rare1:",
      f"    v_max_f32 v{VT}, v{VT}, v{v_m}",
      f"    v_sub_f32 v{VT+1}, v{v_m}, v{VT}",
      f"    v_mul_f32 v{VT+1}, s{s_c}, v{VT+1}",
      f"    v_exp_f32 v{v_f}, v{VT+1}",
      f"    v_mov_b32 v{v_m}, v{VT}",
      f"    v_mul_f32 v{v_mc}, s{s_c}, v{VT}",
      f"    v_add_f32 v{v_mthr}, {f2u(THR_RAW):#x}, v{VT}",
      f"    s_mov_b32 s{s_resc}, 1",
      "    s_branch L_rare1done"]
ool.append(r1)
interleave(pvs[4:], fma_fillers(), pre=0)
advance_unit()
e(f"s_cmp_eq_u32 s{s_resc}, 0")
e("s_cbranch_scc0 L_rare2")
lab("L_rare2done")
r2 = ["L_rare2:", "    s_nop 7", "    s_nop 7"]
for k in range(64):
    r2.append(f"    v_mul_f32 v{VO+k}, v{v_f}, v{VO+k}")
r2 += [f"    v_mul_f32 v{v_l0}, v{v_f}, v{v_l0}",
       f"    v_mul_f32 v{v_l1}, v{v_f}, v{v_l1}",
       f"    s_mov_b32 s{s_resc}, 0",
       "    s_branch L_rare2done"]
ool.append(r2)
e(f"s_sub_u32 s{s_cnt}, s{s_cnt}, 1")
e(f"s_cmp_lg_u32 s{s_cnt}, 0")
e("s_cbranch_scc1 L_loop")

stamp()
INLOOP = False
e(f"v_add_u32 v{v_va}, s{s_lv}, v{v_vbase}")
e("s_waitcnt vmcnt(0)")
e("s_barrier")
lg.reset()
vidx = {}
for t in range(2):
    for dt in range(4):
        for jj in range(2):
            if lg.issued - lg.done >= 14:
                pass
            vidx[(dt, t, jj)] = None
order = [(dt, t, jj) for t in range(2) for dt in range(4) for jj in range(2)]
for k in order[:8]:
    vidx[k] = v_read(*k)
ef = exp_fillers()
for x in ef[:20]:
    e(x)
lg.need(vidx[order[1]])
for k in order[8:]:
    vidx[k] = v_read(*k)
for x in ef[20:]:
    e(x)
e("s_nop 1")
for t in range(2):
    for dt in range(4):
        lg.need(vidx[(dt, t, 1)])
        pv_mfma(dt, t)
e(f"v_add_f32 v{v_l0}, v{v_l0}, v{v_l1}")
e(f"v_mov_b32 v{v_l1}, v{v_l0}")
e("s_nop 1")
e(f"v_permlane32_swap_b32 v{v_l0}, v{v_l1}")
e(f"v_add_f32 v{v_l0}, v{v_l0}, v{v_l1}")
e("s_barrier")
stamp()
TROW = 272
TBUF = 32 * TROW
XBASE = 8 * TBUF
XSZ = 8192 + 512
va_tw, va_tr, va_st, va_x = VT + 8, VT + 9, VT + 10, VT + 11
e(f"s_mul_i32 s{s_t}, s{s_wave}, {TBUF}")
e(f"v_and_b32 v{VT}, 31, v{v_lane}")
e(f"v_mul_u32_u24 v{va_tw}, {TROW}, v{VT}")
e(f"v_lshl_add_u32 v{va_tw}, v{v_h4}, 3, v{va_tw}")
e(f"v_add_u32 v{va_tw}, s{s_t}, v{va_tw}")
e(f"s_cmp_eq_u32 s{s_mode}, 0")
e("s_cbranch_scc1 L_comb")
e(f"v_lshrrev_b32 v{VT}, 4, v{v_lane}")
e(f"v_and_b32 v{VT+1}, 15, v{v_lane}")
e(f"v_mul_u32_u24 v{va_tr}, {TROW}, v{VT}")
e(f"v_lshl_add_u32 v{va_tr}, v{VT+1}, 4, v{va_tr}")
e(f"v_add_u32 v{va_tr}, s{s_t}, v{va_tr}")
e(f"v_lshlrev_b32 v{va_st}, 12, v{VT}")
e(f"v_lshl_add_u32 v{va_st}, v{VT+1}, 4, v{va_st}")
e(f"v_rcp_f32 v{v_f}, v{v_l0}")
e("s_nop 7")
for dt in range(4):
    for k in range(16):
        e(f"v_mul_f32 v{VO+16*dt+k}, v{v_f}, v{VO+16*dt+k}")
    for k in range(8):
        e(f"v_cvt_pk_bf16_f32 v{VKF+8*dt+k}, v{VO+16*dt+2*k}, v{VO+16*dt+2*k+1}")
    e(f"ds_write_b128 v{va_tw}, {vr(VKF+8*dt,4)} offset:{64*dt}")
    e(f"ds_write_b128 v{va_tw}, {vr(VKF+8*dt+4,4)} offset:{64*dt+16}")
e("s_waitcnt lgkmcnt(0)")
for it in range(8):
    e(f"ds_read_b128 {vr(VO+4*it,4)}, v{va_tr} offset:{4*TROW*it}")
for it in range(8):
    e(f"s_waitcnt lgkmcnt({7-it})")
    e(f"s_mov_b32 s{s_t2}, {4*ROWB*it}")
    e(f"buffer_store_dwordx4 {vr(VO+4*it,4)}, v{va_st}, {sr(SRD_O,4)}, s{s_t2} offen")
NS_SAVE = NSTAMP
e("s_waitcnt vmcnt(0)")
stamp(); stamp(True)
dump_stamps()
e("s_endpgm")
NSTAMP = NS_SAVE
lab("L_comb")
e(f"s_mul_i32 s{s_t2}, s{s_wave}, {XSZ}")
e(f"s_add_u32 s{s_t2}, s{s_t2}, {XBASE}")
e(f"s_xor_b32 s{s_t3}, s{s_wave}, 4")
e(f"s_mul_i32 s{s_t3}, s{s_t3}, {XSZ}")
e(f"s_add_u32 s{s_t3}, s{s_t3}, {XBASE}")
e(f"v_lshlrev_b32 v{VT}, 4, v{v_lane}")
e(f"v_add_u32 v{va_x}, s{s_t2}, v{VT}")
e(f"v_add_u32 v{VT+1}, s{s_t3}, v{VT}")
e(f"v_lshlrev_b32 v{VT+2}, 3, v{v_lane}")
e(f"v_add_u32 v{VT+3}, s{s_t3}, v{VT+2}")
e(f"v_add_u32 v{VT+2}, s{s_t2}, v{VT+2}")
e(f"v_mov_b32 v{VT+4}, v{v_m}")
e(f"v_mov_b32 v{VT+5}, v{v_l0}")
e("s_nop 7")
e(f"ds_write_b64 v{VT+2}, {vr(VT+4,2)} offset:8192")
e(f"s_cmp_eq_u32 s{s_grp}, 0")
e("s_cbranch_scc0 L_combB")
for k in range(8):
    e(f"ds_write_b128 v{va_x}, {vr(VO+32+4*k,4)} offset:{1024*k}")
e("s_waitcnt lgkmcnt(0)")
e("s_barrier")
e(f"ds_read_b64 {vr(VT+6,2)}, v{VT+3} offset:8192")
for k in range(8):
    e(f"ds_read_b128 {vr(VO+32+4*k,4)}, v{VT+1} offset:{1024*k}")
e("s_branch L_combJ")
lab("L_combB")
for k in range(8):
    e(f"ds_write_b128 v{va_x}, {vr(VO+4*k,4)} offset:{1024*k}")
e("s_waitcnt lgkmcnt(0)")
e("s_barrier")
e(f"ds_read_b64 {vr(VT+6,2)}, v{VT+3} offset:8192")
for k in range(8):
    e(f"ds_read_b128 {vr(VO+4*k,4)}, v{VT+1} offset:{1024*k}")
lab("L_combJ")
e(f"v_lshrrev_b32 v{VT}, 3, v{v_lane}")
e(f"v_and_b32 v{VT+1}, 7, v{v_lane}")
e(f"v_mul_u32_u24 v{va_tr}, {TROW}, v{VT}")
e(f"v_lshl_add_u32 v{va_tr}, v{VT+1}, 4, v{va_tr}")
e(f"v_add_u32 v{va_tr}, s{s_t}, v{va_tr}")
e(f"v_lshlrev_b32 v{va_st}, 12, v{VT}")
e(f"v_lshl_add_u32 v{va_st}, v{VT+1}, 4, v{va_st}")
e(f"s_lshl_b32 s{s_t3}, s{s_grp}, 7")
e(f"v_add_u32 v{va_st}, s{s_t3}, v{va_st}")
e("s_waitcnt lgkmcnt(8)")
e(f"v_max_f32 v{VT}, v{v_m}, v{VT+6}")
e(f"v_sub_f32 v{VT+1}, v{v_m}, v{VT}")
e(f"v_sub_f32 v{VT+2}, v{VT+6}, v{VT}")
e(f"v_mul_f32 v{VT+1}, s{s_c}, v{VT+1}")
e(f"v_mul_f32 v{VT+2}, s{s_c}, v{VT+2}")
e(f"v_exp_f32 v{VT+1}, v{VT+1}")
e(f"v_exp_f32 v{VT+2}, v{VT+2}")
e("s_nop 0")
e(f"v_mul_f32 v{VT+3}, v{VT+1}, v{v_l0}")
e(f"v_fma_f32 v{VT+3}, v{VT+2}, v{VT+7}, v{VT+3}")
e(f"v_rcp_f32 v{VT+3}, v{VT+3}")
e("s_nop 0")
e(f"v_mul_f32 v{VT+1}, v{VT+1}, v{VT+3}")
e(f"v_mul_f32 v{VT+2}, v{VT+2}, v{VT+3}")
e(f"s_cmp_eq_u32 s{s_grp}, 0")
e(f"s_cselect_b64 vcc, -1, 0")
e("s_nop 1")
e(f"v_cndmask_b32 v{VT+4}, v{VT+2}, v{VT+1}, vcc")
e(f"v_cndmask_b32 v{VT+5}, v{VT+1}, v{VT+2}, vcc")
e("s_waitcnt lgkmcnt(0)")
for dt in range(2):
    for k in range(16):
        e(f"v_mul_f32 v{VS+k}, v{VT+4}, v{VO+16*dt+k}")
    for k in range(16):
        e(f"v_fma_f32 v{VS+k}, v{VT+5}, v{VO+32+16*dt+k}, v{VS+k}")
    for k in range(8):
        e(f"v_cvt_pk_bf16_f32 v{VKF+8*dt+k}, v{VS+2*k}, v{VS+2*k+1}")
    e(f"ds_write_b128 v{va_tw}, {vr(VKF+8*dt,4)} offset:{64*dt}")
    e(f"ds_write_b128 v{va_tw}, {vr(VKF+8*dt+4,4)} offset:{64*dt+16}")
e("s_waitcnt lgkmcnt(0)")
for it in range(4):
    e(f"ds_read_b128 {vr(VVF+4*it,4)}, v{va_tr} offset:{8*TROW*it}")
for it in range(4):
    e(f"s_waitcnt lgkmcnt({3-it})")
    e(f"s_mov_b32 s{s_t2}, {8*ROWB*it}")
    e(f"buffer_store_dwordx4 {vr(VVF+4*it,4)}, v{va_st}, {sr(SRD_O,4)}, s{s_t2} offen")
e("s_waitcnt vmcnt(0)")
stamp(); stamp(True)
dump_stamps()
lab("L_end")
e("s_endpgm")
for b in ool:
    out.extend(b)
out.append('.section .rodata,"a"')
out.append(".p2align 6")
out.append(f".amdhsa_kernel {NAME}_kernel")
out.append(f"  .amdhsa_next_free_vgpr {NVGPR}")
out.append("  .amdhsa_next_free_sgpr 100")
out.append(f"  .amdhsa_accum_offset {NVGPR}")
out.append("  .amdhsa_group_segment_fixed_size 0")
out.append("  .amdhsa_kernarg_size 56")
out.append("  .amdhsa_user_sgpr_count 2")
out.append("  .amdhsa_user_sgpr_kernarg_segment_ptr 1")
out.append("  .amdhsa_system_sgpr_workgroup_id_x 1")
out.append(".end_amdhsa_kernel")

dst = sys.argv[1] if len(sys.argv) > 1 else f"cdna_kernels/{NAME}.s"
open(dst, "w").write("\n".join(out) + "\n")
print("wrote", dst, len(out), "lines")
```

```python
import sys, math, os, struct

NAME = "standalone__ragged_sequences_packed_sequences__ragged"
T, H, D = 2266, 16, 128
ROWB = 4096
KPAD, VPAD = 1040, 1088
KBLK, VBLK = 8 * KPAD, 8 * VPAD
NSLOT = 8
KRING = 0
VRING = NSLOT * KBLK
SCR = VRING + NSLOT * VBLK
SROW = 80
SCRW = 32 * SROW
CTL = SCR + 8 * SCRW
LDS_BYTES = CTL + 128
CSCALE = (D ** -0.5) * math.log2(math.e)
SUMTHR = 1024.0
DIAG = int(os.environ.get("DIAG", "0"))
XP = os.environ.get("XP", "")

def f2u(x):
    return struct.unpack("<I", struct.pack("<f", x))[0]

jobs = []
for j in range(4):
    jobs.append((964, 1456, 16, 4 * j, 964 + 128 * j, min(964 + 128 * (j + 1), 1456), 0))
for qo, qe, s0 in zip((0, 128, 256, 352), (128, 256, 352, 448), (0, 4, 7, 11)):
    jobs.append((516, 964, 14, s0, 516 + qo, 516 + qe, 0))
for qo, qe, s0 in zip((0, 128, 224, 320), (128, 224, 320, 400), (0, 3, 7, 10)):
    jobs.append((0, 400, 13, s0, qo, qe, 0))
jobs.append((1456, 1702, 8, 0, 1456, 1702, 1))
jobs.append((2021, 2266, 8, 0, 2021, 2266, 1))
jobs.append((1702, 1900, 7, 0, 1702, 1900, 1))
jobs.append((400, 516, 8, 0, 400, 516, 2))
DUAL_B = (1900, 2021)
if "norot" in XP:
    jobs = [(a, b, c, 0, e_, f, g) for (a, b, c, d, e_, f, g) in jobs]
assert len(jobs) == 16

out = []
def e(s=""):
    out.append("    " + s if s and not s.endswith(":") else s)
def lab(s):
    out.append(s + ":")

S_Q, S_K, S_V, S_O = 4, 6, 8, 12
SRD_Q, SRD_K, SRD_V, SRD_O = 16, 20, 24, 28
s_w0, s_w1 = 32, 33
s_abase, s_aend, s_NB, s_sig0, s_mode = 34, 35, 36, 37, 38
s_wave, s_head256, s_q0, s_qend = 39, 40, 41, 42
s_t, s_t2, s_t3, s_job = 43, 44, 45, 46
s_nu, s_it, s_maskit, s_kv, s_need, s_land = 47, 48, 49, 50, 51, 52
s_kp, s_vp, s_j0 = 53, 54, 55
s_n, s_rowK, s_rowV, s_mK, s_mV, s_posted, s_free = 56, 57, 58, 59, 60, 61, 62
s_p0, s_p1, s_p2, s_p3 = 63, 64, 65, 66
s_rowEnd, s_rowBeg, s_off, s_limA, s_limB, s_pv = 67, 68, 69, 70, 71, 72
s_qs = 73
s_ti = 74

v_lane, v_h4, v_kbase, v_vbase, v_ka, v_va = 1, 2, 3, 4, 5, 6
v_l, v_sum, v_negm, v_ninf, v_ctl, v_prog, v_flag, v_pa = 7, 8, 9, 10, 11, 12, 13, 14
v_dk, v_dv = 5, 6
VT = 232
VQ, VO = 16, 48
VS = [112, 128]
VP = [144, 152]
VC0 = 160
VKF, VVF = 176, 208
VT = 240
VE_ = 252
NVGPR = 256
VL = 176
VSTAMP = 15

def vr(b, n): return f"v[{b}:{b+n-1}]"
def sr(b, n): return f"s[{b}:{b+n-1}]"

def stamp(real=False):
    if not DIAG: return
    op = "s_memrealtime" if real else "s_memtime"
    e(f"{op} s[82:83]")
    e("s_waitcnt lgkmcnt(0)")
    e("s_mov_b32 m0, s84")
    e(f"v_writelane_b32 v{VSTAMP}, s82, m0")
    e("s_add_u32 s84, s84, 1")
def dump_stamps():
    if not DIAG: return
    e("s_load_dwordx2 s[82:83], s[0:1], 48")
    e("s_waitcnt lgkmcnt(0)")
    e(f"s_lshl_b32 s{s_t}, s2, 3")
    e(f"s_add_u32 s{s_t}, s{s_t}, s{s_wave}")
    e(f"s_lshl_b32 s{s_t}, s{s_t}, 8")
    e(f"s_add_u32 s82, s82, s{s_t}")
    e("s_addc_u32 s83, s83, 0")
    e(f"v_lshlrev_b32 v0, 2, v{v_lane}")
    e(f"global_store_dword v0, v{VSTAMP}, s[82:83]")

class Lgkm:
    def __init__(self):
        self.q = []
    def issue(self, name):
        self.q.append(name)
        assert len(self.q) <= 15, f"too many LDS ops outstanding {self.q}"
    def need(self, name):
        if name in self.q:
            i = self.q.index(name)
            n = len(self.q) - i - 1
            e(f"s_waitcnt lgkmcnt({n})")
            self.q = self.q[i + 1:]
    def drain(self):
        e("s_waitcnt lgkmcnt(0)")
        self.q = []
lg = Lgkm()

ool = []

def k_read(s, koff):
    e(f"ds_read_b128 {vr(VKF+4*s,4)}, v{v_ka} offset:{koff+16*s}")
    lg.issue(f"K{s}")
def v_read(f, jj, voff):
    dt, t = f & 3, f >> 2
    e(f"ds_read_b64_tr_b16 {vr(VVF+4*f+2*jj,2)}, v{v_va} offset:{voff+(2*t+jj)*256+64*dt}")
    lg.issue(f"V{f}{jj}")
def qk_mfma(s, dst, c0):
    c = c0 if s == 0 else vr(dst, 16)
    e(f"v_mfma_f32_32x32x16_bf16 {vr(dst,16)}, {vr(VKF+4*s,4)}, {vr(VQ+4*s,4)}, {c}")
def pv_mfma(f, P):
    dt, t = f & 3, f >> 2
    e(f"v_mfma_f32_32x32x16_bf16 {vr(VO+16*dt,16)}, {vr(VVF+4*f,4)}, {vr(P+4*t,4)}, {vr(VO+16*dt,16)}")

def max_chain(S):
    t = VT
    return [
        f"v_max3_f32 v{t}, v{S+0}, v{S+1}, v{S+2}",
        f"v_max3_f32 v{t+1}, v{S+3}, v{S+4}, v{S+5}",
        f"v_max3_f32 v{t+2}, v{S+6}, v{S+7}, v{S+8}",
        f"v_max3_f32 v{t+3}, v{S+9}, v{S+10}, v{S+11}",
        f"v_max3_f32 v{t+4}, v{S+12}, v{S+13}, v{S+14}",
        f"v_max3_f32 v{t}, v{t}, v{t+1}, v{S+15}",
        f"v_max3_f32 v{t+2}, v{t+2}, v{t+3}, v{t+4}",
        f"v_max_f32 v{t}, v{t}, v{t+2}",
        f"v_mov_b32 v{t+1}, v{t}",
        "s_nop 1",
        f"v_permlane32_swap_b32 v{t}, v{t+1}",
        f"v_max_f32 v{t}, v{t}, v{t+1}",
    ]

def mask_code(S):
    b = [f"    v_sub_u32 v{VT}, s{s_kv}, v{v_h4}"]
    for r0 in range(0, 16, 4):
        for r in range(r0, r0 + 4):
            c = (r & 3) + 8 * (r >> 2)
            b.append(f"    v_cmp_lt_i32 s[{86+2*(r&3)}:{87+2*(r&3)}], {c}, v{VT}")
        for r in range(r0, r0 + 4):
            b.append(f"    v_cndmask_b32 v{S+r}, v{v_ninf}, v{S+r}, s[{86+2*(r&3)}:{87+2*(r&3)}]")
    return b

def plain_exp(S, P):
    b = []
    for k in range(0, 16, 2):
        b.append(f"    v_exp_f32 v{VE_}, v{S+k}")
        b.append(f"    v_exp_f32 v{VE_+1}, v{S+k+1}")
        b.append("    s_nop 0")
        if k == 0:
            b.append(f"    v_add_f32 v{v_sum}, v{VE_}, v{VE_+1}")
        else:
            b.append(f"    v_add_f32 v{v_sum}, v{v_sum}, v{VE_}")
            b.append(f"    v_add_f32 v{v_sum}, v{v_sum}, v{VE_+1}")
        b.append(f"    v_cvt_pk_bf16_f32 v{P+k//2}, v{VE_}, v{VE_+1}")
    return b

def adv(reg, step, end, vdst, vbase):
    return [f"s_add_u32 s{reg}, s{reg}, {step}",
            f"s_cmp_eq_u32 s{reg}, {end}",
            f"s_cselect_b32 s{reg}, 0, s{reg}",
            f"v_add_u32 v{vdst}, s{reg}, v{vbase}"]

COST = {"v_exp": 8, "v_cvt": 5}
def cost(x):
    for k, v in COST.items():
        if x.startswith(k): return v
    return 4

def body(par, has_pv, tag, budget=24):
    Sc, Sn = VS[par], VS[1 - par]
    Pc, Pp = VP[par], VP[1 - par]
    koff = 0 if par == 0 else KBLK
    voff = VBLK if par == 0 else 0
    if DIAG >= 2:
        sv = list(lg.q); stamp(); lg.q = sv
    E = lambda k: VE_ + (k & 3)
    seq = []
    for k in range(16):
        seq.append(f"v_exp_f32 v{E(k)}, v{Sc+k}")
        if k == 2:
            seq.append(f"v_add_f32 v{v_sum}, v{E(0)}, v{E(1)}")
        elif k >= 3:
            seq.append(f"v_add_f32 v{v_sum}, v{v_sum}, v{E(k-1)}")
        if k >= 2 and k % 2 == 0:
            seq.append(f"v_cvt_pk_bf16_f32 v{Pc+(k-2)//2}, v{E(k-2)}, v{E(k-1)}")
    seq.append(f"v_add_u32 v{v_prog}, 1, v{v_prog}")
    seq.append(f"v_add_f32 v{v_sum}, v{v_sum}, v{E(15)}")
    seq.append(f"v_cvt_pk_bf16_f32 v{Pc+7}, v{E(14)}, v{E(15)}")
    seq.append(f"v_cmp_lt_f32 vcc, {f2u(SUMTHR):#x}, v{v_sum}")
    kgap = {10: [0, 1], 11: [2, 3], 12: [4], 13: [5], 14: [6], 15: [7]}
    si = 0
    cum = 0
    BUD = float(os.environ.get("BUD", "26.5"))
    for g in range(16):
        used = cum
        if g < 8:
            if g == 0: lg.need("K3"); used += 4
            if g == 4: lg.need("K7"); used += 4
            qk_mfma(g, Sn, vr(VC0, 16))
        else:
            f = g - 8
            if has_pv:
                if f == 0: lg.need("V31"); used += 4
                if f == 4: lg.need("V71"); used += 4
                pv_mfma(f, Pp)
            else:
                if f == 0: lg.need("F")
        if g == 0:
            e(f"ds_read_b32 v{v_flag}, v{v_ctl}"); lg.issue("F"); used += 4
        if has_pv and 2 <= g <= 9:
            v_read(g - 2, 0, voff); v_read(g - 2, 1, voff); used += 8
        for sk in kgap.get(g, []):
            k_read(sk, koff); used += 4
        if g == 15:
            e(f"ds_write_b32 v{v_pa}, v{v_prog}"); lg.issue("W"); used += 4
        tail = []
        if g == 8:
            e(f"v_readfirstlane_b32 s{s_land}, v{v_flag}"); used += 4
        if g == 9:
            tail += [f"s_cmp_ge_u32 s{s_land}, s{s_it}", f"s_cbranch_scc0 L_poll_{tag}", f"L_polldone_{tag}:"]; used += 10
            ool.append([f"L_poll_{tag}:",
                        f"    ds_read_b32 v{v_flag}, v{v_ctl}",
                        "    s_waitcnt lgkmcnt(0)",
                        f"    v_readfirstlane_b32 s{s_land}, v{v_flag}",
                        f"    s_cmp_ge_u32 s{s_land}, s{s_it}",
                        f"    s_cbranch_scc1 L_polldone_{tag}",
                        "    s_sleep 1",
                        f"    s_branch L_poll_{tag}"])
        if g == 10 and par == 0:
            tail += adv(s_vp, 2 * VBLK, NSLOT * VBLK, v_va, v_vbase)[:3]; used += 12
        if g == 11 and par == 0:
            tail += adv(s_vp, 2 * VBLK, NSLOT * VBLK, v_va, v_vbase)[3:]; used += 4
        if g == 12:
            tail += [f"s_add_u32 s{s_it}, s{s_it}, 1"]; used += 4
        if g == 13 and par == 1:
            tail += adv(s_kp, 2 * KBLK, NSLOT * KBLK, v_ka, v_kbase)[:3]; used += 12
        remaining_gaps = 14 - g
        while si < len(seq) and (used + cost(seq[si]) * 0.5 <= BUD * (g + 1) or g == 14):
            e(seq[si]); used += cost(seq[si]); si += 1
        cum = used
        for x in tail:
            if x.endswith(":"): out.append(x)
            else: e(x)
    assert si == len(seq)
    if par == 1:
        e(adv(s_kp, 2 * KBLK, NSLOT * KBLK, v_ka, v_kbase)[3])
    e(f"s_cbranch_vccnz L_ovf_{tag}")
    lab(f"L_ovfdone_{tag}")
    e(f"v_add_f32 v{v_l}, v{v_l}, v{v_sum}")
    r = [f"L_ovf_{tag}:", "    s_nop 7", "    s_nop 7"]
    r += ["    " + x for x in max_chain(Sc)]
    r += [f"    v_max_f32 v{VT}, 0, v{VT}",
          f"    v_sub_f32 v{VT+1}, 0, v{VT}",
          f"    v_exp_f32 v{VT+1}, v{VT+1}",
          f"    v_sub_f32 v{v_negm}, v{v_negm}, v{VT}"]
    for k in range(16):
        r.append(f"    v_sub_f32 v{Sc+k}, v{Sc+k}, v{VT}")
        r.append(f"    v_sub_f32 v{Sn+k}, v{Sn+k}, v{VT}")
        r.append(f"    v_mov_b32 v{VC0+k}, v{v_negm}")
    for k in range(64):
        r.append(f"    v_mul_f32 v{VO+k}, v{VT+1}, v{VO+k}")
    r.append(f"    v_mul_f32 v{v_l}, v{VT+1}, v{v_l}")
    r += plain_exp(Sc, Pc)
    r.append(f"    s_branch L_ovfdone_{tag}")
    ool.append(r)

def event(par_next, tag, fin, cont):
    ool.append([f"L_ev_{tag}:",
                f"    s_cmp_eq_u32 s{s_it}, s{s_nu}",
                f"    s_cbranch_scc1 {fin}",
                f"    s_mov_b32 s{s_maskit}, s{s_nu}"] + mask_code(VS[par_next]) + [f"    s_branch {cont}"])

def final_pv(par_last, tag):
    P = VP[par_last]
    voff = VBLK if (1 - par_last) == 0 else 0
    lg.drain()
    for f in range(7):
        v_read(f, 0, voff); v_read(f, 1, voff)
    for f in range(8):
        lg.need(f"V{f}1")
        pv_mfma(f, P)
        if f == 0:
            v_read(7, 0, voff); v_read(7, 1, voff)

out.append(f"; @launch grid=(256,1,1) block=(512,1,1) lds={LDS_BYTES}")
out.append('.amdgcn_target "amdgcn-amd-amdhsa--gfx950"')
out.append(".text")
out.append(f".globl {NAME}_kernel")
out.append(".p2align 8")
out.append(f".type {NAME}_kernel,@function")
lab(f"{NAME}_kernel")
e("s_cmp_ge_u32 s2, 256")
e("s_cbranch_scc1 L_end")
if DIAG:
    e("s_mov_b32 s84, 0"); e(f"v_mov_b32 v{VSTAMP}, 0")
stamp(True); stamp()
e(f"v_lshrrev_b32 v{VT}, 6, v0")
e(f"v_mov_b32 v{v_ctl}, {CTL}")
e(f"v_mov_b32 v{v_flag}, 0")
e(f"v_lshl_add_u32 v{v_pa}, v{VT}, 2, v{v_ctl}")
e(f"ds_write_b32 v{v_ctl}, v{v_flag}")
e(f"ds_write_b32 v{v_pa}, v{v_flag} offset:16")
e(f"v_add_u32 v{v_pa}, 16, v{v_pa}")
e(f"v_and_b32 v{v_lane}, 63, v0")
e(f"v_readfirstlane_b32 s{s_wave}, v{VT}")
e("s_waitcnt lgkmcnt(0)")
e("s_load_dwordx8 s[4:11], s[0:1], 0")
e("s_load_dwordx2 s[12:13], s[0:1], 32")
e("s_barrier")
e(f"s_and_b32 s{s_t}, s2, 7")
e(f"s_lshl_b32 s{s_t}, s{s_t}, 1")
e(f"s_bfe_u32 s{s_t2}, s2, 0x10003")
e(f"s_add_u32 s{s_t}, s{s_t}, s{s_t2}")
e(f"s_lshl_b32 s{s_head256}, s{s_t}, 8")
e(f"s_lshr_b32 s{s_job}, s2, 4")
def pack(j):
    a, b, nb, s0, q, qe, mode = jobs[j]
    w0 = a | (b << 12) | (s0 << 24) | (mode << 28)
    w1 = q | (qe << 12) | (nb << 24)
    return w0, w1
w0, w1 = pack(0)
e(f"s_mov_b32 s{s_w0}, {w0:#x}")
e(f"s_mov_b32 s{s_w1}, {w1:#x}")
for j in range(1, 16):
    w0, w1 = pack(j)
    e(f"s_cmp_eq_u32 s{s_job}, {j}")
    e(f"s_cselect_b32 s{s_w0}, {w0:#x}, s{s_w0}")
    e(f"s_cselect_b32 s{s_w1}, {w1:#x}, s{s_w1}")
e(f"s_and_b32 s{s_abase}, s{s_w0}, 0xfff")
e(f"s_bfe_u32 s{s_aend}, s{s_w0}, 0xc000c")
e(f"s_bfe_u32 s{s_sig0}, s{s_w0}, 0x40018")
e(f"s_lshr_b32 s{s_mode}, s{s_w0}, 28")
e(f"s_and_b32 s{s_q0}, s{s_w1}, 0xfff")
e(f"s_bfe_u32 s{s_qend}, s{s_w1}, 0xc000c")
e(f"s_lshr_b32 s{s_NB}, s{s_w1}, 24")
e(f"s_add_u32 s{s_ti}, s{s_wave}, 7")
e(f"s_and_b32 s{s_ti}, s{s_ti}, 7")
e(f"s_lshl_b32 s{s_t}, s{s_ti}, 5")
e(f"s_add_u32 s{s_q0}, s{s_q0}, s{s_t}")
e(f"s_lshr_b32 s{s_t2}, s{s_ti}, 2")
e(f"s_lshl_b32 s{s_t3}, s{s_t2}, 2")
e(f"s_add_u32 s{s_t3}, s{s_t3}, s{s_mode}")
e(f"s_mov_b32 s{s_nu}, s{s_NB}")
e(f"s_mov_b32 s{s_j0}, 0")
e(f"s_sub_u32 s{s_kv}, s{s_aend}, s{s_abase}")
e(f"s_cmp_eq_u32 s{s_mode}, 2")
e(f"s_cselect_b32 s{s_nu}, 4, s{s_nu}")
e(f"s_add_u32 s{s_t}, s{s_t}, {DUAL_B[0]-128}")
e(f"s_cmp_eq_u32 s{s_t3}, 6")
e(f"s_cselect_b32 s{s_q0}, s{s_t}, s{s_q0}")
e(f"s_cselect_b32 s{s_qend}, {DUAL_B[1]}, s{s_qend}")
e(f"s_cselect_b32 s{s_j0}, 4, s{s_j0}")
e(f"s_cselect_b32 s{s_kv}, {DUAL_B[1]-DUAL_B[0]}, s{s_kv}")
e(f"s_cmp_eq_u32 s{s_t3}, 4")
e(f"s_cselect_b32 s{s_qend}, 0, s{s_qend}")
e(f"v_and_b32 v{VT+4}, 31, v{v_lane}")
e(f"v_lshrrev_b32 v{VT+5}, 5, v{v_lane}")
e(f"v_lshrrev_b32 v{VT}, 4, v{v_lane}")
e(f"v_and_b32 v{VT+1}, 15, v{v_lane}")
e(f"v_lshlrev_b32 v{VT+2}, 15, v{VT}")
e(f"v_lshl_add_u32 v{v_dv}, v{VT+1}, 4, v{VT+2}")
e(f"v_and_b32 v{VT+3}, 1, v{VT}")
e(f"v_lshlrev_b32 v{VT+3}, 7, v{VT+3}")
e(f"v_xor_b32 v{v_dk}, v{v_dv}, v{VT+3}")
e(f"s_mul_i32 s{s_qs}, s{s_ti}, {VBLK}")
e(f"s_add_u32 s{s_qs}, s{s_qs}, {VRING+4*VBLK}")
e(f"s_mul_i32 s{s_t}, s{s_ti}, {KBLK}")
e(f"s_cmp_ge_u32 s{s_ti}, 4")
e(f"s_cselect_b32 s{s_qs}, s{s_t}, s{s_qs}")
def srd_rows(dst, ptr, rowreg, endreg):
    e(f"s_lshl_b32 s{s_t}, s{rowreg}, 12")
    e(f"s_add_u32 s{s_t}, s{s_t}, s{s_head256}")
    e(f"s_add_u32 s{dst}, s{ptr}, s{s_t}")
    e(f"s_addc_u32 s{dst+1}, s{ptr+1}, 0")
    e(f"s_sub_i32 s{s_t}, s{endreg}, s{rowreg}")
    e(f"s_lshl_b32 s{s_t}, s{s_t}, 12")
    e(f"s_sub_i32 s{s_t}, s{s_t}, {4096-256}")
    e(f"s_max_i32 s{dst+2}, s{s_t}, 0")
    e(f"s_mov_b32 s{dst+3}, 0x00020000")
e(f"s_lshl_b32 s{s_t2}, s{s_q0}, 12")
e(f"s_add_u32 s{s_t2}, s{s_t2}, s{s_head256}")
e(f"s_sub_i32 s{s_t}, s{s_qend}, s{s_q0}")
e(f"s_lshl_b32 s{s_t}, s{s_t}, 12")
e(f"s_sub_i32 s{s_t}, s{s_t}, {4096-256}")
e(f"s_max_i32 s{SRD_Q+2}, s{s_t}, 0")
e(f"s_mov_b32 s{SRD_Q+3}, 0x00020000")
e(f"s_mov_b32 s{SRD_O+2}, s{SRD_Q+2}")
e(f"s_mov_b32 s{SRD_O+3}, 0x00020000")
e("s_waitcnt lgkmcnt(0)")
stamp()
e(f"s_add_u32 s{SRD_Q}, s{S_Q}, s{s_t2}")
e(f"s_addc_u32 s{SRD_Q+1}, s{S_Q+1}, 0")
def q_dma(tag):
    e(f"s_cmp_lt_u32 s{s_q0}, s{s_qend}")
    e(f"s_cbranch_scc0 L_noq{tag}")
    for u in range(8):
        e(f"s_add_u32 m0, s{s_qs}, {u*KPAD}")
        e(f"s_mov_b32 s{s_t}, {u*ROWB}")
        e(f"buffer_load_dwordx4 v{v_dk}, {sr(SRD_Q,4)}, s{s_t} offen lds")
    lab(f"L_noq{tag}")
e(f"s_add_u32 s{SRD_O}, s{S_O}, s{s_t2}")
e(f"s_addc_u32 s{SRD_O+1}, s{S_O+1}, 0")
e(f"s_cmp_eq_u32 s{s_wave}, 0")
e("s_cbranch_scc1 L_loader")
q_dma("c")
def kbase_calc():
    e(f"v_and_b32 v{VT+7}, 7, v{VT+4}")
    e(f"v_mul_u32_u24 v{v_kbase}, {KPAD}, v{VT+7}")
    e(f"v_lshrrev_b32 v{VT+7}, 3, v{VT+4}")
    e(f"v_lshl_add_u32 v{v_kbase}, v{VT+7}, 8, v{v_kbase}")
    e(f"v_and_b32 v{VT+7}, 1, v{VT+7}")
    e(f"v_xor_b32 v{VT+7}, v{VT+7}, v{VT+5}")
    e(f"v_lshl_add_u32 v{v_kbase}, v{VT+7}, 7, v{v_kbase}")
    e(f"v_add_u32 v{VT+6}, s{s_qs}, v{v_kbase}")
kbase_calc()
def q_fetch(wait):
    e(f"s_waitcnt vmcnt({wait})")
    for k in range(8):
        e(f"ds_read_b128 {vr(VQ+4*k,4)}, v{VT+6} offset:{16*k}")
    e(f"v_mov_b32 v{v_prog}, 1")
    e("s_waitcnt lgkmcnt(0)")
    e(f"ds_write_b32 v{v_pa}, v{v_prog}")
def ctl_init():
    pass
lab("L_compute")
e(f"s_cmp_lt_u32 s{s_q0}, s{s_qend}")
e("s_cbranch_scc0 L_idle")
if "prio" in XP: e("s_setprio 2")
e(f"v_lshlrev_b32 v{v_h4}, 2, v{VT+5}")
e(f"v_bfe_u32 v{VT+7}, v{v_lane}, 2, 2")
e(f"v_add_u32 v{VT+7}, v{VT+7}, v{v_h4}")
e(f"v_mul_u32_u24 v{v_vbase}, {VPAD}, v{VT+7}")
e(f"v_and_b32 v{VT+7}, 1, v{v_lane}")
e(f"v_lshl_add_u32 v{v_vbase}, v{VT+7}, 5, v{v_vbase}")
e(f"v_bfe_u32 v{VT+7}, v{v_lane}, 4, 1")
e(f"v_lshl_add_u32 v{v_vbase}, v{VT+7}, 4, v{v_vbase}")
e(f"v_bfe_u32 v{VT+7}, v{v_lane}, 1, 1")
e(f"v_lshl_add_u32 v{v_vbase}, v{VT+7}, 3, v{v_vbase}")
e(f"v_add_u32 v{v_vbase}, {VRING}, v{v_vbase}")
e(f"v_mov_b32 v{v_ninf}, 0xff800000")
e(f"v_mov_b32 v{v_l}, 0")
for k in range(64):
    e(f"v_mov_b32 v{VO+k}, 0")
e(f"s_sub_u32 s{s_t}, s{s_nu}, 1")
e(f"s_sub_u32 s{s_maskit}, s{s_t}, s{s_sig0}")
e(f"s_lshl_b32 s{s_t}, s{s_t}, 5")
e(f"s_sub_u32 s{s_kv}, s{s_kv}, s{s_t}")
e(f"s_cmp_ge_u32 s{s_kv}, 32")
e(f"s_cselect_b32 s{s_maskit}, s{s_nu}, s{s_maskit}")
e(f"s_add_u32 s{s_it}, s{s_j0}, 4")
e(f"s_add_u32 s{s_maskit}, s{s_maskit}, s{s_it}")
e(f"s_add_u32 s{s_nu}, s{s_nu}, s{s_it}")
e(f"s_mul_i32 s{s_kp}, s{s_j0}, {KBLK}")
e(f"s_mul_i32 s{s_vp}, s{s_j0}, {VBLK}")
e(f"v_add_u32 v{v_ka}, s{s_kp}, v{v_kbase}")
e(f"v_add_u32 v{v_va}, s{s_vp}, v{v_vbase}")
e(f"s_add_u32 s{s_need}, s{s_j0}, 3")
e(f"s_cmp_eq_u32 s{s_j0}, 0")
e(f"s_cselect_b32 s{s_t3}, 2, s{s_need}")
stamp()
e(f"s_cmp_eq_u32 s{s_wave}, 0")
e("s_cbranch_scc1 L_qdone")
q_fetch(0)
lab("L_qdone")
e(f"s_mov_b32 s86, {f2u(CSCALE):#x}")
e(f"s_mov_b32 s87, {f2u(CSCALE):#x}")
e(f"s_mov_b32 s{s_t2}, 0xffff0000")
for s in range(8):
    for k in range(4):
        q = VQ + 4 * s + k
        e(f"v_lshlrev_b32 v{VT+2*k}, 16, v{q}")
        e(f"v_and_b32 v{VT+2*k+1}, s{s_t2}, v{q}")
    for k in range(8):
        e(f"v_mul_f32 v{VT+k}, s86, v{VT+k}")
    for k in range(4):
        q = VQ + 4 * s + k
        e(f"v_cvt_pk_bf16_f32 v{q}, v{VT+2*k}, v{VT+2*k+1}")
stamp()
lab("L_poll_pre")
e(f"ds_read_b32 v{v_flag}, v{v_ctl}")
e("s_waitcnt lgkmcnt(0)")
e(f"v_readfirstlane_b32 s{s_land}, v{v_flag}")
e(f"s_cmp_ge_u32 s{s_land}, s{s_t3}")
e("s_cbranch_scc1 L_poll_pre_done")
e("s_sleep 1")
e("s_branch L_poll_pre")
lab("L_poll_pre_done")
stamp()
lg.q = []
for s in range(8):
    k_read(s, 0)
for s in range(8):
    lg.need(f"K{s}")
    qk_mfma(s, VS[0], "0")
for s in range(8):
    k_read(s, KBLK)
for x in adv(s_kp, 2 * KBLK, NSLOT * KBLK, v_ka, v_kbase): e(x)
e("s_nop 7")
e(f"s_cmp_eq_u32 s{s_it}, s{s_maskit}")
e("s_cbranch_scc1 L_mask_pre")
lab("L_maskdone_pre")
ool.append(["L_mask_pre:", f"    s_mov_b32 s{s_maskit}, s{s_nu}"] + mask_code(VS[0]) + ["    s_branch L_maskdone_pre"])
for x in max_chain(VS[0]): e(x)
e(f"v_sub_f32 v{v_negm}, 0, v{VT}")
for k in range(16):
    e(f"v_sub_f32 v{VS[0]+k}, v{VS[0]+k}, v{VT}")
for k in range(16):
    e(f"v_mov_b32 v{VC0+k}, v{v_negm}")
lg.drain()
stamp()
body(0, False, "i0")
lg.drain()
e(f"s_mul_i32 s{s_vp}, s{s_j0}, {VBLK}")
e(f"v_add_u32 v{v_va}, s{s_vp}, v{v_vbase}")
stamp()
steady = [f"K{s}" for s in range(8)] + ["W"]
e(f"s_cmp_eq_u32 s{s_it}, s{s_maskit}")
e("s_cbranch_scc1 L_ev_even")
lab("L_loop")
lg.q = list(steady)
body(1, True, "odd")
assert lg.q == steady, lg.q
e(f"s_cmp_eq_u32 s{s_it}, s{s_maskit}")
e("s_cbranch_scc1 L_ev_odd")
lab("L_loop_mid")
body(0, True, "even")
assert lg.q == steady, lg.q
e(f"s_cmp_lg_u32 s{s_it}, s{s_maskit}")
e("s_cbranch_scc1 L_loop")
e("s_branch L_ev_even")
event(0, "odd", "L_fin_odd", "L_loop_mid")
event(1, "even", "L_fin_even", "L_loop")
lab("L_fin_even")
stamp()
lg.q = list(steady)
final_pv(0, "e")
e("s_branch L_epi")
lab("L_fin_odd")
stamp()
lg.q = list(steady)
final_pv(1, "o")
lab("L_epi")
e(f"v_mov_b32 v{VT+1}, v{v_l}")
e("s_nop 1")
e(f"v_permlane32_swap_b32 v{v_l}, v{VT+1}")
e(f"v_add_f32 v{v_l}, v{v_l}, v{VT+1}")
e(f"v_rcp_f32 v{VT+2}, v{v_l}")
va_tw, va_tr, va_st = VT + 8, VT + 9, VT + 10
e(f"s_mul_i32 s{s_t}, s{s_wave}, {SCRW}")
e(f"s_add_u32 s{s_t}, s{s_t}, {SCR}")
e(f"v_and_b32 v{VT}, 31, v{v_lane}")
e(f"v_mul_u32_u24 v{va_tw}, {SROW}, v{VT}")
e(f"v_lshl_add_u32 v{va_tw}, v{v_h4}, 3, v{va_tw}")
e(f"v_add_u32 v{va_tw}, s{s_t}, v{va_tw}")
e(f"v_lshrrev_b32 v{VT}, 2, v{v_lane}")
e(f"v_and_b32 v{VT+1}, 3, v{v_lane}")
e(f"v_mul_u32_u24 v{va_tr}, {SROW}, v{VT}")
e(f"v_lshl_add_u32 v{va_tr}, v{VT+1}, 4, v{va_tr}")
e(f"v_add_u32 v{va_tr}, s{s_t}, v{va_tr}")
e(f"v_lshlrev_b32 v{va_st}, 12, v{VT}")
e(f"v_lshl_add_u32 v{va_st}, v{VT+1}, 4, v{va_st}")
e(f"s_mov_b32 s{s_t2}, {16*ROWB}")
e("s_nop 3")
def norm(dt):
    for k in range(16):
        e(f"v_mul_f32 v{VO+16*dt+k}, v{VT+2}, v{VO+16*dt+k}")
    for k in range(8):
        e(f"v_cvt_pk_bf16_f32 v{VKF+8*dt+k}, v{VO+16*dt+2*k}, v{VO+16*dt+2*k+1}")
norm(0)
for dt in range(4):
    e(f"ds_write_b128 v{va_tw}, {vr(VKF+8*dt,4)}")
    e(f"ds_write_b128 v{va_tw}, {vr(VKF+8*dt+4,4)} offset:16")
    e("s_waitcnt lgkmcnt(0)")
    e(f"ds_read_b128 {vr(VVF+8*dt,4)}, v{va_tr}")
    e(f"ds_read_b128 {vr(VVF+8*dt+4,4)}, v{va_tr} offset:{16*SROW}")
    if dt < 3:
        norm(dt + 1)
    e("s_waitcnt lgkmcnt(0)")
    e(f"buffer_store_dwordx4 {vr(VVF+8*dt,4)}, v{va_st}, {sr(SRD_O,4)}, 0 offen offset:{64*dt}")
    e(f"buffer_store_dwordx4 {vr(VVF+8*dt+4,4)}, v{va_st}, {sr(SRD_O,4)}, s{s_t2} offen offset:{64*dt}")
lab("L_exit")
if DIAG:
    e("s_waitcnt vmcnt(0)")
stamp(); stamp(True)
dump_stamps()
lab("L_end")
e("s_endpgm")

lab("L_idle")
e(f"v_mov_b32 v{v_prog}, 0x7fffffff")
e(f"ds_write_b32 v{v_pa}, v{v_prog}")
e("s_branch L_exit")
lab("L_loader")
e(f"v_mov_b32 v{VL+11}, {CTL+16}")
for u in range(8):
    e(f"v_add_u32 v{VL+16+u}, {u*ROWB-(u&3)*KPAD}, v{v_dk}")
    e(f"v_add_u32 v{VL+24+u}, {u*ROWB-(u&3)*VPAD}, v{v_dv}")
e(f"s_add_u32 s{SRD_K}, s{S_K}, s{s_head256}")
e(f"s_addc_u32 s{SRD_K+1}, s{S_K+1}, 0")
e(f"s_add_u32 s{SRD_V}, s{S_V}, s{s_head256}")
e(f"s_addc_u32 s{SRD_V+1}, s{S_V+1}, 0")
e(f"s_lshl_b32 s{s_limA}, s{s_aend}, 12")
e(f"s_sub_u32 s{s_limA}, s{s_limA}, {4096-256}")
e(f"s_mov_b32 s{s_limB}, {(DUAL_B[1]-1)*4096+256}")
e(f"s_mov_b32 s{SRD_K+2}, s{s_limA}")
e(f"s_mov_b32 s{SRD_V+2}, s{s_limA}")
e(f"s_mov_b32 s{SRD_K+3}, 0x00020000")
e(f"s_mov_b32 s{SRD_V+3}, 0x00020000")
e(f"s_lshl_b32 s{s_rowBeg}, s{s_abase}, 12")
e(f"s_lshl_b32 s{s_t}, s{s_sig0}, 17")
e(f"s_add_u32 s{s_rowK}, s{s_rowBeg}, s{s_t}")
e(f"s_mov_b32 s{s_rowV}, s{s_rowK}")
e(f"s_lshl_b32 s{s_t}, s{s_NB}, 17")
e(f"s_add_u32 s{s_rowEnd}, s{s_rowBeg}, s{s_t}")
e(f"s_cmp_eq_u32 s{s_mode}, 2")
e(f"s_cselect_b32 s{s_rowEnd}, {(400+128)*4096}, s{s_rowEnd}")
e(f"s_cselect_b32 s{s_rowBeg}, {DUAL_B[0]*4096}, s{s_rowBeg}")
e(f"s_cselect_b32 s{s_limB}, s{s_limB}, s{s_limA}")
e(f"s_mov_b32 s{s_mK}, {KRING}")
e(f"s_mov_b32 s{s_mV}, {VRING}")
e(f"s_mov_b32 s{s_n}, 0")
e(f"s_mov_b32 s{s_posted}, 0")
e(f"s_mov_b32 s{s_free}, 0")
for p in (s_p0, s_p1, s_p2, s_p3):
    e(f"s_mov_b32 s{p}, 0")
e(f"s_mov_b32 s{s_pv}, 0")

def post_from(reg):
    e(f"s_max_u32 s{s_posted}, s{s_posted}, s{reg}")
    e(f"v_mov_b32 v{VL+8}, s{s_posted}")
    e(f"ds_write_b32 v{v_ctl}, v{VL+8}")

def wait_free(needreg, tag):
    e(f"s_cmp_ge_i32 s{s_free}, s{needreg}")
    e(f"s_cbranch_scc1 L_free_{tag}")
    e("s_waitcnt vmcnt(0)")
    post_from(s_pv)
    lab(f"L_spin_{tag}")
    e(f"ds_read_b128 {vr(VL+4,4)}, v{VL+11}")
    e(f"ds_read_b128 {vr(VL+12,4)}, v{VL+11} offset:16")
    e("s_waitcnt lgkmcnt(0)")
    e(f"v_min3_u32 v{VL+4}, v{VL+4}, v{VL+5}, v{VL+6}")
    e(f"v_min3_u32 v{VL+12}, v{VL+12}, v{VL+13}, v{VL+14}")
    e(f"v_min3_u32 v{VL+4}, v{VL+4}, v{VL+7}, v{VL+15}")
    e(f"v_min_u32 v{VL+4}, v{VL+4}, v{VL+12}")
    e("s_nop 0")
    e(f"v_readfirstlane_b32 s{s_free}, v{VL+4}")
    e(f"s_cmp_ge_i32 s{s_free}, s{needreg}")
    e(f"s_cbranch_scc1 L_free_{tag}")
    e("s_sleep 3")
    e(f"s_branch L_spin_{tag}")
    lab(f"L_free_{tag}")

def item(kind, win=3):
    srd = SRD_K if kind == "K" else SRD_V
    row = s_rowK if kind == "K" else s_rowV
    m = s_mK if kind == "K" else s_mV
    pad = KPAD if kind == "K" else VPAD
    blk = KBLK if kind == "K" else VBLK
    ring = KRING if kind == "K" else VRING
    vo = VL + 16 if kind == "K" else VL + 24
    e(f"s_mov_b32 m0, s{m}")
    e(f"s_add_u32 s{s_off}, s{m}, {4*pad}")
    for u in range(8):
        if u == 4:
            e(f"s_mov_b32 m0, s{s_off}")
            e("s_nop 0")
        e(f"buffer_load_dwordx4 v{vo+u}, {sr(srd,4)}, s{row} offen offset:{(u&3)*pad} lds")
    e(f"s_add_u32 s{row}, s{row}, {32*ROWB}")
    e(f"s_cmp_eq_u32 s{row}, s{s_rowEnd}")
    e(f"s_cselect_b32 s{row}, s{s_rowBeg}, s{row}")
    e(f"s_cselect_b32 s{srd+2}, s{s_limB}, s{srd+2}")
    e(f"s_add_u32 s{m}, s{m}, {blk}")
    e(f"s_cmp_eq_u32 s{m}, {ring+NSLOT*blk}")
    e(f"s_cselect_b32 s{m}, {ring}, s{m}")
    if DIAG >= 2: stamp()
    if win == 3:
        e("s_waitcnt vmcnt(24)")
        post_from(s_p0)
        e(f"s_mov_b32 s{s_p0}, s{s_p1}")
        e(f"s_mov_b32 s{s_p1}, s{s_p2}")
        e(f"s_mov_b32 s{s_p2}, s{s_pv}")

def post_const(v):
    e(f"s_mov_b32 s{s_posted}, {v}")
    e(f"v_mov_b32 v{VL+8}, {v}")
    e(f"ds_write_b32 v{v_ctl}, v{VL+8}")

item("K", 0); item("K", 0)
ctl_init()
item("K", 0)
e("s_waitcnt vmcnt(8)"); post_const(2)
item("V", 0)
e("s_waitcnt vmcnt(8)"); post_const(3)
q_dma("l")
kbase_calc()
item("K", 0)
e("s_waitcnt vmcnt(8)"); post_const(4)
e(f"s_cmp_lt_u32 s{s_q0}, s{s_qend}")
e("s_cbranch_scc0 L_ld_noq")
q_fetch(8)
e("s_branch L_ld_q")
lab("L_ld_noq")
e(f"v_mov_b32 v{v_prog}, 0x7fffffff")
e(f"ds_write_b32 v{v_pa}, v{v_prog}")
lab("L_ld_q")
e(f"s_mov_b32 s{s_n}, 4")
e(f"s_mov_b32 s{s_pv}, 4")
lab("L_ld_loop")
e(f"s_sub_i32 s{s_t3}, s{s_n}, 8")
e(f"s_cmp_lt_u32 s{s_n}, 11")
e(f"s_cselect_b32 s{s_t3}, 1, s{s_t3}")
wait_free(s_t3, "V")
e(f"s_add_u32 s{s_pv}, s{s_n}, 1")
item("V")
e(f"s_cmp_ge_u32 s{s_n}, s{s_NB}")
e("s_cbranch_scc1 L_ld_noK")
e(f"s_sub_i32 s{s_t3}, s{s_n}, 7")
e(f"s_max_i32 s{s_t3}, s{s_t3}, 1")
e(f"s_cmp_eq_u32 s{s_n}, 8")
e(f"s_cselect_b32 s{s_t3}, 2, s{s_t3}")
wait_free(s_t3, "K")
item("K")
lab("L_ld_noK")
e(f"s_add_u32 s{s_n}, s{s_n}, 1")
e(f"s_add_u32 s{s_t}, s{s_NB}, 3")
e(f"s_cmp_lt_u32 s{s_n}, s{s_t}")
e("s_cbranch_scc1 L_ld_loop")
for w, p in ((16, s_p0), (8, s_p1), (0, s_p2)):
    e(f"s_waitcnt vmcnt({w})")
    post_from(p)
e("s_branch L_compute")

for b in ool:
    out.extend(b)
out.append('.section .rodata,"a"')
out.append(".p2align 6")
out.append(f".amdhsa_kernel {NAME}_kernel")
out.append(f"  .amdhsa_next_free_vgpr {NVGPR}")
out.append("  .amdhsa_next_free_sgpr 96")
out.append(f"  .amdhsa_accum_offset {NVGPR}")
out.append("  .amdhsa_group_segment_fixed_size 0")
out.append("  .amdhsa_kernarg_size 56")
out.append("  .amdhsa_user_sgpr_count 2")
out.append("  .amdhsa_user_sgpr_kernarg_segment_ptr 1")
out.append("  .amdhsa_system_sgpr_workgroup_id_x 1")
out.append(".end_amdhsa_kernel")

dst = sys.argv[1] if len(sys.argv) > 1 else f"cdna_kernels/{NAME}.s"
open(dst, "w").write("\n".join(out) + "\n")
print("wrote", dst, len(out), "lines")
```

```python
import sys, math, os, struct

NAME = "standalone__ragged_sequences_packed_sequences__ragged"
T, H, D = 2266, 16, 128
ROWB = 4096
KPAD, VPAD = 1040, 1088
KBLK, VBLK = 8 * KPAD, 8 * VPAD
NSLOT = 8
KRING = 0
VRING = NSLOT * KBLK
SCR = VRING + NSLOT * VBLK
SROW = 80
SCRW = 32 * SROW
CTL = SCR + 8 * SCRW
LDS_BYTES = CTL + 128
CSCALE = (D ** -0.5) * math.log2(math.e)
SUMTHR = 1024.0
DIAG = int(os.environ.get("DIAG", "0"))
XP = os.environ.get("XP", "")

def f2u(x):
    return struct.unpack("<I", struct.pack("<f", x))[0]

jobs = []
for j in range(4):
    jobs.append((964, 1456, 16, 4 * j, 964 + 128 * j, min(964 + 128 * (j + 1), 1456), 0))
for qo, qe, s0 in zip((0, 128, 256, 352), (128, 256, 352, 448), (0, 4, 7, 11)):
    jobs.append((516, 964, 14, s0, 516 + qo, 516 + qe, 0))
for qo, qe, s0 in zip((0, 128, 224, 320), (128, 224, 320, 400), (0, 3, 7, 10)):
    jobs.append((0, 400, 13, s0, qo, qe, 0))
jobs.append((1456, 1702, 8, 0, 1456, 1702, 1))
jobs.append((2021, 2266, 8, 0, 2021, 2266, 1))
jobs.append((1702, 1900, 7, 0, 1702, 1900, 1))
jobs.append((400, 516, 8, 0, 400, 516, 2))
DUAL_B = (1900, 2021)
if "norot" in XP:
    jobs = [(a, b, c, 0, e_, f, g) for (a, b, c, d, e_, f, g) in jobs]
assert len(jobs) == 16

out = []
def e(s=""):
    out.append("    " + s if s and not s.endswith(":") else s)
def lab(s):
    out.append(s + ":")

S_Q, S_K, S_V, S_O = 4, 6, 8, 12
SRD_Q, SRD_K, SRD_V, SRD_O = 16, 20, 24, 28
s_w0, s_w1 = 32, 33
s_abase, s_aend, s_NB, s_sig0, s_mode = 34, 35, 36, 37, 38
s_wave, s_head256, s_q0, s_qend = 39, 40, 41, 42
s_t, s_t2, s_t3, s_job = 43, 44, 45, 46
s_nu, s_it, s_maskit, s_kv, s_need, s_land = 47, 48, 49, 50, 51, 52
s_kp, s_vp, s_j0 = 53, 54, 55
s_n, s_rowK, s_rowV, s_mK, s_mV, s_posted, s_free = 56, 57, 58, 59, 60, 61, 62
s_p0, s_p1, s_p2, s_p3 = 63, 64, 65, 66
s_rowEnd, s_rowBeg, s_off, s_limA, s_limB, s_pv = 67, 68, 69, 70, 71, 72
s_qs = 73
s_ti = 74

v_lane, v_h4, v_kbase, v_vbase, v_ka, v_va = 1, 2, 3, 4, 5, 6
v_l, v_sum, v_negm, v_ninf, v_ctl, v_prog, v_flag, v_pa = 7, 8, 9, 10, 11, 12, 13, 14
v_dk, v_dv = 5, 6
VT = 232
VQ, VO = 16, 48
VS = [112, 128]
VP = [144, 152]
VC0 = 160
VKF, VVF = 176, 208
VT = 240
VE_ = 252
NVGPR = 256
VL = 176
VSTAMP = 15

def vr(b, n): return f"v[{b}:{b+n-1}]"
def sr(b, n): return f"s[{b}:{b+n-1}]"

def stamp(real=False):
    if not DIAG: return
    op = "s_memrealtime" if real else "s_memtime"
    e(f"{op} s[82:83]")
    e("s_waitcnt lgkmcnt(0)")
    e("s_mov_b32 m0, s84")
    e(f"v_writelane_b32 v{VSTAMP}, s82, m0")
    e("s_add_u32 s84, s84, 1")
def dump_stamps():
    if not DIAG: return
    e("s_load_dwordx2 s[82:83], s[0:1], 48")
    e("s_waitcnt lgkmcnt(0)")
    e(f"s_lshl_b32 s{s_t}, s2, 3")
    e(f"s_add_u32 s{s_t}, s{s_t}, s{s_wave}")
    e(f"s_lshl_b32 s{s_t}, s{s_t}, 8")
    e(f"s_add_u32 s82, s82, s{s_t}")
    e("s_addc_u32 s83, s83, 0")
    e(f"v_lshlrev_b32 v0, 2, v{v_lane}")
    e(f"global_store_dword v0, v{VSTAMP}, s[82:83]")

class Lgkm:
    def __init__(self):
        self.q = []
    def issue(self, name):
        self.q.append(name)
        assert len(self.q) <= 15, f"too many LDS ops outstanding {self.q}"
    def need(self, name):
        if name in self.q:
            i = self.q.index(name)
            n = len(self.q) - i - 1
            e(f"s_waitcnt lgkmcnt({n})")
            self.q = self.q[i + 1:]
    def drain(self):
        e("s_waitcnt lgkmcnt(0)")
        self.q = []
lg = Lgkm()

ool = []

def k_read(s, koff):
    e(f"ds_read_b128 {vr(VKF+4*s,4)}, v{v_ka} offset:{koff+16*s}")
    lg.issue(f"K{s}")
def v_read(f, jj, voff):
    dt, t = f & 3, f >> 2
    e(f"ds_read_b64_tr_b16 {vr(VVF+4*f+2*jj,2)}, v{v_va} offset:{voff+(2*t+jj)*256+64*dt}")
    lg.issue(f"V{f}{jj}")
def qk_mfma(s, dst, c0):
    c = c0 if s == 0 else vr(dst, 16)
    e(f"v_mfma_f32_32x32x16_bf16 {vr(dst,16)}, {vr(VKF+4*s,4)}, {vr(VQ+4*s,4)}, {c}")
def pv_mfma(f, P):
    dt, t = f & 3, f >> 2
    e(f"v_mfma_f32_32x32x16_bf16 {vr(VO+16*dt,16)}, {vr(VVF+4*f,4)}, {vr(P+4*t,4)}, {vr(VO+16*dt,16)}")

def max_chain(S):
    t = VT
    return [
        f"v_max3_f32 v{t}, v{S+0}, v{S+1}, v{S+2}",
        f"v_max3_f32 v{t+1}, v{S+3}, v{S+4}, v{S+5}",
        f"v_max3_f32 v{t+2}, v{S+6}, v{S+7}, v{S+8}",
        f"v_max3_f32 v{t+3}, v{S+9}, v{S+10}, v{S+11}",
        f"v_max3_f32 v{t+4}, v{S+12}, v{S+13}, v{S+14}",
        f"v_max3_f32 v{t}, v{t}, v{t+1}, v{S+15}",
        f"v_max3_f32 v{t+2}, v{t+2}, v{t+3}, v{t+4}",
        f"v_max_f32 v{t}, v{t}, v{t+2}",
        f"v_mov_b32 v{t+1}, v{t}",
        "s_nop 1",
        f"v_permlane32_swap_b32 v{t}, v{t+1}",
        f"v_max_f32 v{t}, v{t}, v{t+1}",
    ]

def mask_code(S):
    b = [f"    v_sub_u32 v{VT}, s{s_kv}, v{v_h4}"]
    for r0 in range(0, 16, 4):
        for r in range(r0, r0 + 4):
            c = (r & 3) + 8 * (r >> 2)
            b.append(f"    v_cmp_lt_i32 s[{86+2*(r&3)}:{87+2*(r&3)}], {c}, v{VT}")
        for r in range(r0, r0 + 4):
            b.append(f"    v_cndmask_b32 v{S+r}, v{v_ninf}, v{S+r}, s[{86+2*(r&3)}:{87+2*(r&3)}]")
    return b

def plain_exp(S, P):
    b = []
    for k in range(0, 16, 2):
        b.append(f"    v_exp_f32 v{VE_}, v{S+k}")
        b.append(f"    v_exp_f32 v{VE_+1}, v{S+k+1}")
        b.append("    s_nop 0")
        if k == 0:
            b.append(f"    v_add_f32 v{v_sum}, v{VE_}, v{VE_+1}")
        else:
            b.append(f"    v_add_f32 v{v_sum}, v{v_sum}, v{VE_}")
            b.append(f"    v_add_f32 v{v_sum}, v{v_sum}, v{VE_+1}")
        b.append(f"    v_cvt_pk_bf16_f32 v{P+k//2}, v{VE_}, v{VE_+1}")
    return b

def adv(reg, step, end, vdst, vbase):
    return [f"s_add_u32 s{reg}, s{reg}, {step}",
            f"s_cmp_eq_u32 s{reg}, {end}",
            f"s_cselect_b32 s{reg}, 0, s{reg}",
            f"v_add_u32 v{vdst}, s{reg}, v{vbase}"]

COST = {"v_exp": 8, "v_cvt": 5}
def cost(x):
    for k, v in COST.items():
        if x.startswith(k): return v
    return 4

def body(par, has_pv, tag, budget=24):
    Sc, Sn = VS[par], VS[1 - par]
    Pc, Pp = VP[par], VP[1 - par]
    koff = 0 if par == 0 else KBLK
    voff = VBLK if par == 0 else 0
    if DIAG >= 2:
        sv = list(lg.q); stamp(); lg.q = sv
    E = lambda k: VE_ + (k & 3)
    seq = []
    for k in range(16):
        seq.append(f"v_exp_f32 v{E(k)}, v{Sc+k}")
        if k == 2:
            seq.append(f"v_add_f32 v{v_sum}, v{E(0)}, v{E(1)}")
        elif k >= 3:
            seq.append(f"v_add_f32 v{v_sum}, v{v_sum}, v{E(k-1)}")
        if k >= 2 and k % 2 == 0:
            seq.append(f"v_cvt_pk_bf16_f32 v{Pc+(k-2)//2}, v{E(k-2)}, v{E(k-1)}")
    seq.append(f"v_add_u32 v{v_prog}, 1, v{v_prog}")
    seq.append(f"v_add_f32 v{v_sum}, v{v_sum}, v{E(15)}")
    seq.append(f"v_cvt_pk_bf16_f32 v{Pc+7}, v{E(14)}, v{E(15)}")
    seq.append(f"v_cmp_lt_f32 vcc, {f2u(SUMTHR):#x}, v{v_sum}")
    kgap = {10: [0, 1], 11: [2, 3], 12: [4], 13: [5], 14: [6], 15: [7]}
    si = 0
    cum = 0
    BUD = float(os.environ.get("BUD", "26.5"))
    for g in range(16):
        used = cum
        if g < 8:
            if g == 0: lg.need("K3"); used += 4
            if g == 4: lg.need("K7"); used += 4
            qk_mfma(g, Sn, vr(VC0, 16))
        else:
            f = g - 8
            if has_pv:
                if f == 0: lg.need("V31"); used += 4
                if f == 4: lg.need("V71"); used += 4
                pv_mfma(f, Pp)
            else:
                if f == 0: lg.need("F")
        if g == 0:
            e(f"ds_read_b32 v{v_flag}, v{v_ctl}"); lg.issue("F"); used += 4
        if has_pv and 2 <= g <= 9:
            v_read(g - 2, 0, voff); v_read(g - 2, 1, voff); used += 8
        for sk in kgap.get(g, []):
            k_read(sk, koff); used += 4
        if g == 15:
            e(f"ds_write_b32 v{v_pa}, v{v_prog}"); lg.issue("W"); used += 4
        tail = []
        if g == 8:
            e(f"v_readfirstlane_b32 s{s_land}, v{v_flag}"); used += 4
        if g == 9:
            tail += [f"s_cmp_ge_u32 s{s_land}, s{s_it}", f"s_cbranch_scc0 L_poll_{tag}", f"L_polldone_{tag}:"]; used += 10
            ool.append([f"L_poll_{tag}:",
                        f"    ds_read_b32 v{v_flag}, v{v_ctl}",
                        "    s_waitcnt lgkmcnt(0)",
                        f"    v_readfirstlane_b32 s{s_land}, v{v_flag}",
                        f"    s_cmp_ge_u32 s{s_land}, s{s_it}",
                        f"    s_cbranch_scc1 L_polldone_{tag}",
                        "    s_sleep 1",
                        f"    s_branch L_poll_{tag}"])
        if g == 10 and par == 0:
            tail += adv(s_vp, 2 * VBLK, NSLOT * VBLK, v_va, v_vbase)[:3]; used += 12
        if g == 11 and par == 0:
            tail += adv(s_vp, 2 * VBLK, NSLOT * VBLK, v_va, v_vbase)[3:]; used += 4
        if g == 12:
            tail += [f"s_add_u32 s{s_it}, s{s_it}, 1"]; used += 4
        if g == 13 and par == 1:
            tail += adv(s_kp, 2 * KBLK, NSLOT * KBLK, v_ka, v_kbase)[:3]; used += 12
        remaining_gaps = 14 - g
        while si < len(seq) and (used + cost(seq[si]) * 0.5 <= BUD * (g + 1) or g == 14):
            e(seq[si]); used += cost(seq[si]); si += 1
        cum = used
        for x in tail:
            if x.endswith(":"): out.append(x)
            else: e(x)
    assert si == len(seq)
    if par == 1:
        e(adv(s_kp, 2 * KBLK, NSLOT * KBLK, v_ka, v_kbase)[3])
    e(f"s_cbranch_vccnz L_ovf_{tag}")
    lab(f"L_ovfdone_{tag}")
    e(f"v_add_f32 v{v_l}, v{v_l}, v{v_sum}")
    r = [f"L_ovf_{tag}:", "    s_nop 7", "    s_nop 7"]
    r += ["    " + x for x in max_chain(Sc)]
    r += [f"    v_max_f32 v{VT}, 0, v{VT}",
          f"    v_sub_f32 v{VT+1}, 0, v{VT}",
          f"    v_exp_f32 v{VT+1}, v{VT+1}",
          f"    v_sub_f32 v{v_negm}, v{v_negm}, v{VT}"]
    for k in range(16):
        r.append(f"    v_sub_f32 v{Sc+k}, v{Sc+k}, v{VT}")
        r.append(f"    v_sub_f32 v{Sn+k}, v{Sn+k}, v{VT}")
        r.append(f"    v_mov_b32 v{VC0+k}, v{v_negm}")
    for k in range(64):
        r.append(f"    v_mul_f32 v{VO+k}, v{VT+1}, v{VO+k}")
    r.append(f"    v_mul_f32 v{v_l}, v{VT+1}, v{v_l}")
    r += plain_exp(Sc, Pc)
    r.append(f"    s_branch L_ovfdone_{tag}")
    ool.append(r)

def event(par_next, tag, fin, cont):
    ool.append([f"L_ev_{tag}:",
                f"    s_cmp_eq_u32 s{s_it}, s{s_nu}",
                f"    s_cbranch_scc1 {fin}",
                f"    s_mov_b32 s{s_maskit}, s{s_nu}"] + mask_code(VS[par_next]) + [f"    s_branch {cont}"])

def final_pv(par_last, tag):
    P = VP[par_last]
    voff = VBLK if (1 - par_last) == 0 else 0
    lg.drain()
    for f in range(7):
        v_read(f, 0, voff); v_read(f, 1, voff)
    for f in range(8):
        lg.need(f"V{f}1")
        pv_mfma(f, P)
        if f == 0:
            v_read(7, 0, voff); v_read(7, 1, voff)

out.append(f"; @launch grid=(256,1,1) block=(512,1,1) lds={LDS_BYTES}")
out.append('.amdgcn_target "amdgcn-amd-amdhsa--gfx950"')
out.append(".text")
out.append(f".globl {NAME}_kernel")
out.append(".p2align 8")
out.append(f".type {NAME}_kernel,@function")
lab(f"{NAME}_kernel")
e("s_cmp_ge_u32 s2, 256")
e("s_cbranch_scc1 L_end")
if DIAG:
    e("s_mov_b32 s84, 0"); e(f"v_mov_b32 v{VSTAMP}, 0")
stamp(True); stamp()
if "dbg" in XP:
    e("s_memrealtime s[76:77]")
    e("s_memtime s[78:79]")
e(f"v_lshrrev_b32 v{VT}, 6, v0")
e(f"v_mov_b32 v{v_ctl}, {CTL}")
e(f"v_mov_b32 v{v_flag}, 0")
e(f"v_lshl_add_u32 v{v_pa}, v{VT}, 2, v{v_ctl}")
e(f"ds_write_b32 v{v_ctl}, v{v_flag}")
e(f"ds_write_b32 v{v_pa}, v{v_flag} offset:16")
e(f"v_add_u32 v{v_pa}, 16, v{v_pa}")
e(f"v_and_b32 v{v_lane}, 63, v0")
e(f"v_readfirstlane_b32 s{s_wave}, v{VT}")
e("s_waitcnt lgkmcnt(0)")
e("s_load_dwordx8 s[4:11], s[0:1], 0")
e("s_load_dwordx2 s[12:13], s[0:1], 32")
e("s_barrier")
e(f"s_and_b32 s{s_t}, s2, 7")
e(f"s_lshl_b32 s{s_t}, s{s_t}, 1")
e(f"s_bfe_u32 s{s_t2}, s2, 0x10003")
e(f"s_add_u32 s{s_t}, s{s_t}, s{s_t2}")
e(f"s_lshl_b32 s{s_head256}, s{s_t}, 8")
e(f"s_lshr_b32 s{s_job}, s2, 4")
def pack(j):
    a, b, nb, s0, q, qe, mode = jobs[j]
    w0 = a | (b << 12) | (s0 << 24) | (mode << 28)
    w1 = q | (qe << 12) | (nb << 24)
    return w0, w1
w0, w1 = pack(0)
e(f"s_mov_b32 s{s_w0}, {w0:#x}")
e(f"s_mov_b32 s{s_w1}, {w1:#x}")
for j in range(1, 16):
    w0, w1 = pack(j)
    e(f"s_cmp_eq_u32 s{s_job}, {j}")
    e(f"s_cselect_b32 s{s_w0}, {w0:#x}, s{s_w0}")
    e(f"s_cselect_b32 s{s_w1}, {w1:#x}, s{s_w1}")
e(f"s_and_b32 s{s_abase}, s{s_w0}, 0xfff")
e(f"s_bfe_u32 s{s_aend}, s{s_w0}, 0xc000c")
e(f"s_bfe_u32 s{s_sig0}, s{s_w0}, 0x40018")
e(f"s_lshr_b32 s{s_mode}, s{s_w0}, 28")
e(f"s_and_b32 s{s_q0}, s{s_w1}, 0xfff")
e(f"s_bfe_u32 s{s_qend}, s{s_w1}, 0xc000c")
e(f"s_lshr_b32 s{s_NB}, s{s_w1}, 24")
e(f"s_add_u32 s{s_ti}, s{s_wave}, 7")
e(f"s_and_b32 s{s_ti}, s{s_ti}, 7")
e(f"s_lshl_b32 s{s_t}, s{s_ti}, 5")
e(f"s_add_u32 s{s_q0}, s{s_q0}, s{s_t}")
e(f"s_lshr_b32 s{s_t2}, s{s_ti}, 2")
e(f"s_lshl_b32 s{s_t3}, s{s_t2}, 2")
e(f"s_add_u32 s{s_t3}, s{s_t3}, s{s_mode}")
e(f"s_mov_b32 s{s_nu}, s{s_NB}")
e(f"s_mov_b32 s{s_j0}, 0")
e(f"s_sub_u32 s{s_kv}, s{s_aend}, s{s_abase}")
e(f"s_cmp_eq_u32 s{s_mode}, 2")
e(f"s_cselect_b32 s{s_nu}, 4, s{s_nu}")
e(f"s_add_u32 s{s_t}, s{s_t}, {DUAL_B[0]-128}")
e(f"s_cmp_eq_u32 s{s_t3}, 6")
e(f"s_cselect_b32 s{s_q0}, s{s_t}, s{s_q0}")
e(f"s_cselect_b32 s{s_qend}, {DUAL_B[1]}, s{s_qend}")
e(f"s_cselect_b32 s{s_j0}, 4, s{s_j0}")
e(f"s_cselect_b32 s{s_kv}, {DUAL_B[1]-DUAL_B[0]}, s{s_kv}")
e(f"s_cmp_eq_u32 s{s_t3}, 4")
e(f"s_cselect_b32 s{s_qend}, 0, s{s_qend}")
e(f"v_and_b32 v{VT+4}, 31, v{v_lane}")
e(f"v_lshrrev_b32 v{VT+5}, 5, v{v_lane}")
e(f"v_lshrrev_b32 v{VT}, 4, v{v_lane}")
e(f"v_and_b32 v{VT+1}, 15, v{v_lane}")
e(f"v_lshlrev_b32 v{VT+2}, 15, v{VT}")
e(f"v_lshl_add_u32 v{v_dv}, v{VT+1}, 4, v{VT+2}")
e(f"v_and_b32 v{VT+3}, 1, v{VT}")
e(f"v_lshlrev_b32 v{VT+3}, 7, v{VT+3}")
e(f"v_xor_b32 v{v_dk}, v{v_dv}, v{VT+3}")
e(f"s_mul_i32 s{s_qs}, s{s_ti}, {VBLK}")
e(f"s_add_u32 s{s_qs}, s{s_qs}, {VRING+4*VBLK}")
e(f"s_mul_i32 s{s_t}, s{s_ti}, {KBLK}")
e(f"s_cmp_ge_u32 s{s_ti}, 4")
e(f"s_cselect_b32 s{s_qs}, s{s_t}, s{s_qs}")
def srd_rows(dst, ptr, rowreg, endreg):
    e(f"s_lshl_b32 s{s_t}, s{rowreg}, 12")
    e(f"s_add_u32 s{s_t}, s{s_t}, s{s_head256}")
    e(f"s_add_u32 s{dst}, s{ptr}, s{s_t}")
    e(f"s_addc_u32 s{dst+1}, s{ptr+1}, 0")
    e(f"s_sub_i32 s{s_t}, s{endreg}, s{rowreg}")
    e(f"s_lshl_b32 s{s_t}, s{s_t}, 12")
    e(f"s_sub_i32 s{s_t}, s{s_t}, {4096-256}")
    e(f"s_max_i32 s{dst+2}, s{s_t}, 0")
    e(f"s_mov_b32 s{dst+3}, 0x00020000")
e(f"s_lshl_b32 s{s_t2}, s{s_q0}, 12")
e(f"s_add_u32 s{s_t2}, s{s_t2}, s{s_head256}")
e(f"s_sub_i32 s{s_t}, s{s_qend}, s{s_q0}")
e(f"s_lshl_b32 s{s_t}, s{s_t}, 12")
e(f"s_sub_i32 s{s_t}, s{s_t}, {4096-256}")
e(f"s_max_i32 s{SRD_Q+2}, s{s_t}, 0")
e(f"s_mov_b32 s{SRD_Q+3}, 0x00020000")
e(f"s_mov_b32 s{SRD_O+2}, s{SRD_Q+2}")
e(f"s_mov_b32 s{SRD_O+3}, 0x00020000")
e("s_waitcnt lgkmcnt(0)")
stamp()
e(f"s_add_u32 s{SRD_Q}, s{S_Q}, s{s_t2}")
e(f"s_addc_u32 s{SRD_Q+1}, s{S_Q+1}, 0")
def q_dma(tag):
    e(f"s_cmp_lt_u32 s{s_q0}, s{s_qend}")
    e(f"s_cbranch_scc0 L_noq{tag}")
    for u in range(8):
        e(f"s_add_u32 m0, s{s_qs}, {u*KPAD}")
        e(f"s_mov_b32 s{s_t}, {u*ROWB}")
        e(f"buffer_load_dwordx4 v{v_dk}, {sr(SRD_Q,4)}, s{s_t} offen lds")
    lab(f"L_noq{tag}")
e(f"s_add_u32 s{SRD_O}, s{S_O}, s{s_t2}")
e(f"s_addc_u32 s{SRD_O+1}, s{S_O+1}, 0")
e(f"s_cmp_eq_u32 s{s_wave}, 0")
e("s_cbranch_scc1 L_loader")
q_dma("c")
def kbase_calc():
    e(f"v_and_b32 v{VT+7}, 7, v{VT+4}")
    e(f"v_mul_u32_u24 v{v_kbase}, {KPAD}, v{VT+7}")
    e(f"v_lshrrev_b32 v{VT+7}, 3, v{VT+4}")
    e(f"v_lshl_add_u32 v{v_kbase}, v{VT+7}, 8, v{v_kbase}")
    e(f"v_and_b32 v{VT+7}, 1, v{VT+7}")
    e(f"v_xor_b32 v{VT+7}, v{VT+7}, v{VT+5}")
    e(f"v_lshl_add_u32 v{v_kbase}, v{VT+7}, 7, v{v_kbase}")
    e(f"v_add_u32 v{VT+6}, s{s_qs}, v{v_kbase}")
kbase_calc()
def q_fetch(wait):
    e(f"s_waitcnt vmcnt({wait})")
    for k in range(8):
        e(f"ds_read_b128 {vr(VQ+4*k,4)}, v{VT+6} offset:{16*k}")
    e(f"v_mov_b32 v{v_prog}, 1")
    e("s_waitcnt lgkmcnt(0)")
    e(f"ds_write_b32 v{v_pa}, v{v_prog}")
def ctl_init():
    pass
lab("L_compute")
e(f"s_cmp_lt_u32 s{s_q0}, s{s_qend}")
e("s_cbranch_scc0 L_idle")
if "prio" in XP: e("s_setprio 2")
e(f"v_lshlrev_b32 v{v_h4}, 2, v{VT+5}")
e(f"v_bfe_u32 v{VT+7}, v{v_lane}, 2, 2")
e(f"v_add_u32 v{VT+7}, v{VT+7}, v{v_h4}")
e(f"v_mul_u32_u24 v{v_vbase}, {VPAD}, v{VT+7}")
e(f"v_and_b32 v{VT+7}, 1, v{v_lane}")
e(f"v_lshl_add_u32 v{v_vbase}, v{VT+7}, 5, v{v_vbase}")
e(f"v_bfe_u32 v{VT+7}, v{v_lane}, 4, 1")
e(f"v_lshl_add_u32 v{v_vbase}, v{VT+7}, 4, v{v_vbase}")
e(f"v_bfe_u32 v{VT+7}, v{v_lane}, 1, 1")
e(f"v_lshl_add_u32 v{v_vbase}, v{VT+7}, 3, v{v_vbase}")
e(f"v_add_u32 v{v_vbase}, {VRING}, v{v_vbase}")
e(f"v_mov_b32 v{v_ninf}, 0xff800000")
e(f"v_mov_b32 v{v_l}, 0")
for k in range(64):
    e(f"v_mov_b32 v{VO+k}, 0")
e(f"s_sub_u32 s{s_t}, s{s_nu}, 1")
e(f"s_sub_u32 s{s_maskit}, s{s_t}, s{s_sig0}")
e(f"s_lshl_b32 s{s_t}, s{s_t}, 5")
e(f"s_sub_u32 s{s_kv}, s{s_kv}, s{s_t}")
e(f"s_cmp_ge_u32 s{s_kv}, 32")
e(f"s_cselect_b32 s{s_maskit}, s{s_nu}, s{s_maskit}")
e(f"s_add_u32 s{s_it}, s{s_j0}, 4")
e(f"s_add_u32 s{s_maskit}, s{s_maskit}, s{s_it}")
e(f"s_add_u32 s{s_nu}, s{s_nu}, s{s_it}")
e(f"s_mul_i32 s{s_kp}, s{s_j0}, {KBLK}")
e(f"s_mul_i32 s{s_vp}, s{s_j0}, {VBLK}")
e(f"v_add_u32 v{v_ka}, s{s_kp}, v{v_kbase}")
e(f"v_add_u32 v{v_va}, s{s_vp}, v{v_vbase}")
e(f"s_add_u32 s{s_need}, s{s_j0}, 3")
e(f"s_cmp_eq_u32 s{s_j0}, 0")
e(f"s_cselect_b32 s{s_t3}, 2, s{s_need}")
stamp()
e(f"s_cmp_eq_u32 s{s_wave}, 0")
e("s_cbranch_scc1 L_qdone")
q_fetch(0)
lab("L_qdone")
e(f"s_mov_b32 s86, {f2u(CSCALE):#x}")
e(f"s_mov_b32 s87, {f2u(CSCALE):#x}")
e(f"s_mov_b32 s{s_t2}, 0xffff0000")
for s in range(8):
    for k in range(4):
        q = VQ + 4 * s + k
        e(f"v_lshlrev_b32 v{VT+2*k}, 16, v{q}")
        e(f"v_and_b32 v{VT+2*k+1}, s{s_t2}, v{q}")
    for k in range(8):
        e(f"v_mul_f32 v{VT+k}, s86, v{VT+k}")
    for k in range(4):
        q = VQ + 4 * s + k
        e(f"v_cvt_pk_bf16_f32 v{q}, v{VT+2*k}, v{VT+2*k+1}")
stamp()
lab("L_poll_pre")
e(f"ds_read_b32 v{v_flag}, v{v_ctl}")
e("s_waitcnt lgkmcnt(0)")
e(f"v_readfirstlane_b32 s{s_land}, v{v_flag}")
e(f"s_cmp_ge_u32 s{s_land}, s{s_t3}")
e("s_cbranch_scc1 L_poll_pre_done")
e("s_sleep 1")
e("s_branch L_poll_pre")
lab("L_poll_pre_done")
stamp()
lg.q = []
for s in range(8):
    k_read(s, 0)
for s in range(8):
    lg.need(f"K{s}")
    qk_mfma(s, VS[0], "0")
for s in range(8):
    k_read(s, KBLK)
for x in adv(s_kp, 2 * KBLK, NSLOT * KBLK, v_ka, v_kbase): e(x)
e("s_nop 7")
e(f"s_cmp_eq_u32 s{s_it}, s{s_maskit}")
e("s_cbranch_scc1 L_mask_pre")
lab("L_maskdone_pre")
ool.append(["L_mask_pre:", f"    s_mov_b32 s{s_maskit}, s{s_nu}"] + mask_code(VS[0]) + ["    s_branch L_maskdone_pre"])
for x in max_chain(VS[0]): e(x)
e(f"v_sub_f32 v{v_negm}, 0, v{VT}")
for k in range(16):
    e(f"v_sub_f32 v{VS[0]+k}, v{VS[0]+k}, v{VT}")
for k in range(16):
    e(f"v_mov_b32 v{VC0+k}, v{v_negm}")
lg.drain()
stamp()
body(0, False, "i0")
lg.drain()
e(f"s_mul_i32 s{s_vp}, s{s_j0}, {VBLK}")
e(f"v_add_u32 v{v_va}, s{s_vp}, v{v_vbase}")
stamp()
steady = [f"K{s}" for s in range(8)] + ["W"]
e(f"s_cmp_eq_u32 s{s_it}, s{s_maskit}")
e("s_cbranch_scc1 L_ev_even")
lab("L_loop")
lg.q = list(steady)
body(1, True, "odd")
assert lg.q == steady, lg.q
e(f"s_cmp_eq_u32 s{s_it}, s{s_maskit}")
e("s_cbranch_scc1 L_ev_odd")
lab("L_loop_mid")
body(0, True, "even")
assert lg.q == steady, lg.q
e(f"s_cmp_lg_u32 s{s_it}, s{s_maskit}")
e("s_cbranch_scc1 L_loop")
e("s_branch L_ev_even")
event(0, "odd", "L_fin_odd", "L_loop_mid")
event(1, "even", "L_fin_even", "L_loop")
lab("L_fin_even")
stamp()
lg.q = list(steady)
final_pv(0, "e")
e("s_branch L_epi")
lab("L_fin_odd")
stamp()
lg.q = list(steady)
final_pv(1, "o")
lab("L_epi")
e(f"v_mov_b32 v{VT+1}, v{v_l}")
e("s_nop 1")
e(f"v_permlane32_swap_b32 v{v_l}, v{VT+1}")
e(f"v_add_f32 v{v_l}, v{v_l}, v{VT+1}")
e(f"v_rcp_f32 v{VT+2}, v{v_l}")
va_tw, va_tr, va_st = VT + 8, VT + 9, VT + 10
e(f"s_mul_i32 s{s_t}, s{s_wave}, {SCRW}")
e(f"s_add_u32 s{s_t}, s{s_t}, {SCR}")
e(f"v_and_b32 v{VT}, 31, v{v_lane}")
e(f"v_mul_u32_u24 v{va_tw}, {SROW}, v{VT}")
e(f"v_lshl_add_u32 v{va_tw}, v{v_h4}, 3, v{va_tw}")
e(f"v_add_u32 v{va_tw}, s{s_t}, v{va_tw}")
e(f"v_lshrrev_b32 v{VT}, 2, v{v_lane}")
e(f"v_and_b32 v{VT+1}, 3, v{v_lane}")
e(f"v_mul_u32_u24 v{va_tr}, {SROW}, v{VT}")
e(f"v_lshl_add_u32 v{va_tr}, v{VT+1}, 4, v{va_tr}")
e(f"v_add_u32 v{va_tr}, s{s_t}, v{va_tr}")
e(f"v_lshlrev_b32 v{va_st}, 12, v{VT}")
e(f"v_lshl_add_u32 v{va_st}, v{VT+1}, 4, v{va_st}")
e(f"s_mov_b32 s{s_t2}, {16*ROWB}")
e("s_nop 3")
def norm(dt):
    for k in range(16):
        e(f"v_mul_f32 v{VO+16*dt+k}, v{VT+2}, v{VO+16*dt+k}")
    for k in range(8):
        e(f"v_cvt_pk_bf16_f32 v{VKF+8*dt+k}, v{VO+16*dt+2*k}, v{VO+16*dt+2*k+1}")
norm(0)
for dt in range(4):
    e(f"ds_write_b128 v{va_tw}, {vr(VKF+8*dt,4)}")
    e(f"ds_write_b128 v{va_tw}, {vr(VKF+8*dt+4,4)} offset:16")
    e("s_waitcnt lgkmcnt(0)")
    e(f"ds_read_b128 {vr(VVF+8*dt,4)}, v{va_tr}")
    e(f"ds_read_b128 {vr(VVF+8*dt+4,4)}, v{va_tr} offset:{16*SROW}")
    if dt < 3:
        norm(dt + 1)
    e("s_waitcnt lgkmcnt(0)")
    e(f"buffer_store_dwordx4 {vr(VVF+8*dt,4)}, v{va_st}, {sr(SRD_O,4)}, 0 offen offset:{64*dt}")
    e(f"buffer_store_dwordx4 {vr(VVF+8*dt+4,4)}, v{va_st}, {sr(SRD_O,4)}, s{s_t2} offen offset:{64*dt}")
lab("L_exit")
if "dbg" in XP:
    e("s_waitcnt vmcnt(0)")
    e("s_memrealtime s[92:93]")
    e("s_memtime s[94:95]")
    e("s_load_dwordx2 s[82:83], s[0:1], 40")
    e("s_waitcnt lgkmcnt(0)")
    e("s_not_b32 s76, s76")
    e("s_sub_u32 s94, s94, s78")
    e("v_mov_b32 v20, 0")
    e("v_mov_b32 v21, s76")
    e("v_mov_b32 v22, s92")
    e("v_mov_b32 v23, s94")
    e("s_mov_b64 exec, 1")
    e("global_atomic_umax v20, v21, s[82:83]")
    e("global_atomic_umax v20, v22, s[82:83] offset:4")
    e("global_atomic_umax v20, v23, s[82:83] offset:8")
if DIAG:
    e("s_waitcnt vmcnt(0)")
stamp(); stamp(True)
dump_stamps()
lab("L_end")
e("s_endpgm")

lab("L_idle")
e(f"v_mov_b32 v{v_prog}, 0x7fffffff")
e(f"ds_write_b32 v{v_pa}, v{v_prog}")
e("s_branch L_exit")
lab("L_loader")
e(f"v_mov_b32 v{VL+11}, {CTL+16}")
for u in range(8):
    e(f"v_add_u32 v{VL+16+u}, {u*ROWB-(u&3)*KPAD}, v{v_dk}")
    e(f"v_add_u32 v{VL+24+u}, {u*ROWB-(u&3)*VPAD}, v{v_dv}")
e(f"s_add_u32 s{SRD_K}, s{S_K}, s{s_head256}")
e(f"s_addc_u32 s{SRD_K+1}, s{S_K+1}, 0")
e(f"s_add_u32 s{SRD_V}, s{S_V}, s{s_head256}")
e(f"s_addc_u32 s{SRD_V+1}, s{S_V+1}, 0")
e(f"s_lshl_b32 s{s_limA}, s{s_aend}, 12")
e(f"s_sub_u32 s{s_limA}, s{s_limA}, {4096-256}")
e(f"s_mov_b32 s{s_limB}, {(DUAL_B[1]-1)*4096+256}")
e(f"s_mov_b32 s{SRD_K+2}, s{s_limA}")
e(f"s_mov_b32 s{SRD_V+2}, s{s_limA}")
e(f"s_mov_b32 s{SRD_K+3}, 0x00020000")
e(f"s_mov_b32 s{SRD_V+3}, 0x00020000")
e(f"s_lshl_b32 s{s_rowBeg}, s{s_abase}, 12")
e(f"s_lshl_b32 s{s_t}, s{s_sig0}, 17")
e(f"s_add_u32 s{s_rowK}, s{s_rowBeg}, s{s_t}")
e(f"s_mov_b32 s{s_rowV}, s{s_rowK}")
e(f"s_lshl_b32 s{s_t}, s{s_NB}, 17")
e(f"s_add_u32 s{s_rowEnd}, s{s_rowBeg}, s{s_t}")
e(f"s_cmp_eq_u32 s{s_mode}, 2")
e(f"s_cselect_b32 s{s_rowEnd}, {(400+128)*4096}, s{s_rowEnd}")
e(f"s_cselect_b32 s{s_rowBeg}, {DUAL_B[0]*4096}, s{s_rowBeg}")
e(f"s_cselect_b32 s{s_limB}, s{s_limB}, s{s_limA}")
e(f"s_mov_b32 s{s_mK}, {KRING}")
e(f"s_mov_b32 s{s_mV}, {VRING}")
e(f"s_mov_b32 s{s_n}, 0")
e(f"s_mov_b32 s{s_posted}, 0")
e(f"s_mov_b32 s{s_free}, 0")
for p in (s_p0, s_p1, s_p2, s_p3):
    e(f"s_mov_b32 s{p}, 0")
e(f"s_mov_b32 s{s_pv}, 0")

def post_from(reg):
    e(f"s_max_u32 s{s_posted}, s{s_posted}, s{reg}")
    e(f"v_mov_b32 v{VL+8}, s{s_posted}")
    e(f"ds_write_b32 v{v_ctl}, v{VL+8}")

def wait_free(needreg, tag):
    e(f"s_cmp_ge_i32 s{s_free}, s{needreg}")
    e(f"s_cbranch_scc1 L_free_{tag}")
    e("s_waitcnt vmcnt(0)")
    post_from(s_pv)
    lab(f"L_spin_{tag}")
    e(f"ds_read_b128 {vr(VL+4,4)}, v{VL+11}")
    e(f"ds_read_b128 {vr(VL+12,4)}, v{VL+11} offset:16")
    e("s_waitcnt lgkmcnt(0)")
    e(f"v_min3_u32 v{VL+4}, v{VL+4}, v{VL+5}, v{VL+6}")
    e(f"v_min3_u32 v{VL+12}, v{VL+12}, v{VL+13}, v{VL+14}")
    e(f"v_min3_u32 v{VL+4}, v{VL+4}, v{VL+7}, v{VL+15}")
    e(f"v_min_u32 v{VL+4}, v{VL+4}, v{VL+12}")
    e("s_nop 0")
    e(f"v_readfirstlane_b32 s{s_free}, v{VL+4}")
    e(f"s_cmp_ge_i32 s{s_free}, s{needreg}")
    e(f"s_cbranch_scc1 L_free_{tag}")
    e("s_sleep 3")
    e(f"s_branch L_spin_{tag}")
    lab(f"L_free_{tag}")

def item(kind, win=3):
    srd = SRD_K if kind == "K" else SRD_V
    row = s_rowK if kind == "K" else s_rowV
    m = s_mK if kind == "K" else s_mV
    pad = KPAD if kind == "K" else VPAD
    blk = KBLK if kind == "K" else VBLK
    ring = KRING if kind == "K" else VRING
    vo = VL + 16 if kind == "K" else VL + 24
    e(f"s_mov_b32 m0, s{m}")
    e(f"s_add_u32 s{s_off}, s{m}, {4*pad}")
    for u in range(8):
        if u == 4:
            e(f"s_mov_b32 m0, s{s_off}")
            e("s_nop 0")
        e(f"buffer_load_dwordx4 v{vo+u}, {sr(srd,4)}, s{row} offen offset:{(u&3)*pad} lds")
    e(f"s_add_u32 s{row}, s{row}, {32*ROWB}")
    e(f"s_cmp_eq_u32 s{row}, s{s_rowEnd}")
    e(f"s_cselect_b32 s{row}, s{s_rowBeg}, s{row}")
    e(f"s_cselect_b32 s{srd+2}, s{s_limB}, s{srd+2}")
    e(f"s_add_u32 s{m}, s{m}, {blk}")
    e(f"s_cmp_eq_u32 s{m}, {ring+NSLOT*blk}")
    e(f"s_cselect_b32 s{m}, {ring}, s{m}")
    if DIAG >= 2: stamp()
    if win == 3:
        e("s_waitcnt vmcnt(24)")
        post_from(s_p0)
        e(f"s_mov_b32 s{s_p0}, s{s_p1}")
        e(f"s_mov_b32 s{s_p1}, s{s_p2}")
        e(f"s_mov_b32 s{s_p2}, s{s_pv}")

def post_const(v):
    e(f"s_mov_b32 s{s_posted}, {v}")
    e(f"v_mov_b32 v{VL+8}, {v}")
    e(f"ds_write_b32 v{v_ctl}, v{VL+8}")

item("K", 0); item("K", 0)
ctl_init()
item("K", 0)
e("s_waitcnt vmcnt(8)"); post_const(2)
item("V", 0)
e("s_waitcnt vmcnt(8)"); post_const(3)
q_dma("l")
kbase_calc()
item("K", 0)
e("s_waitcnt vmcnt(8)"); post_const(4)
e(f"s_cmp_lt_u32 s{s_q0}, s{s_qend}")
e("s_cbranch_scc0 L_ld_noq")
q_fetch(8)
e("s_branch L_ld_q")
lab("L_ld_noq")
e(f"v_mov_b32 v{v_prog}, 0x7fffffff")
e(f"ds_write_b32 v{v_pa}, v{v_prog}")
lab("L_ld_q")
e(f"s_mov_b32 s{s_n}, 4")
e(f"s_mov_b32 s{s_pv}, 4")
lab("L_ld_loop")
e(f"s_sub_i32 s{s_t3}, s{s_n}, 8")
e(f"s_cmp_lt_u32 s{s_n}, 11")
e(f"s_cselect_b32 s{s_t3}, 1, s{s_t3}")
wait_free(s_t3, "V")
e(f"s_add_u32 s{s_pv}, s{s_n}, 1")
item("V")
e(f"s_cmp_ge_u32 s{s_n}, s{s_NB}")
e("s_cbranch_scc1 L_ld_noK")
e(f"s_sub_i32 s{s_t3}, s{s_n}, 7")
e(f"s_max_i32 s{s_t3}, s{s_t3}, 1")
e(f"s_cmp_eq_u32 s{s_n}, 8")
e(f"s_cselect_b32 s{s_t3}, 2, s{s_t3}")
wait_free(s_t3, "K")
item("K")
lab("L_ld_noK")
e(f"s_add_u32 s{s_n}, s{s_n}, 1")
e(f"s_add_u32 s{s_t}, s{s_NB}, 3")
e(f"s_cmp_lt_u32 s{s_n}, s{s_t}")
e("s_cbranch_scc1 L_ld_loop")
for w, p in ((16, s_p0), (8, s_p1), (0, s_p2)):
    e(f"s_waitcnt vmcnt({w})")
    post_from(p)
e("s_branch L_compute")

for b in ool:
    out.extend(b)
out.append('.section .rodata,"a"')
out.append(".p2align 6")
out.append(f".amdhsa_kernel {NAME}_kernel")
out.append(f"  .amdhsa_next_free_vgpr {NVGPR}")
out.append("  .amdhsa_next_free_sgpr 96")
out.append(f"  .amdhsa_accum_offset {NVGPR}")
out.append("  .amdhsa_group_segment_fixed_size 0")
out.append("  .amdhsa_kernarg_size 56")
out.append("  .amdhsa_user_sgpr_count 2")
out.append("  .amdhsa_user_sgpr_kernarg_segment_ptr 1")
out.append("  .amdhsa_system_sgpr_workgroup_id_x 1")
out.append(".end_amdhsa_kernel")

dst = sys.argv[1] if len(sys.argv) > 1 else f"cdna_kernels/{NAME}.s"
open(dst, "w").write("\n".join(out) + "\n")
print("wrote", dst, len(out), "lines")
```

```python
import sys, math, os, struct

NAME = "standalone__ragged_sequences_packed_sequences__ragged"
T, H, D = 2266, 16, 128
ROWB = 4096
KPAD, VPAD = 1040, 1088
KBLK, VBLK = 8 * KPAD, 8 * VPAD
NSLOT = 8
KRING = 0
VRING = NSLOT * KBLK
SCR = VRING + NSLOT * VBLK
SROW = 80
SCRW = 32 * SROW
CTL = SCR + 8 * SCRW
LDS_BYTES = CTL + 128
CSCALE = (D ** -0.5) * math.log2(math.e)
SUMTHR = 1024.0
DIAG = int(os.environ.get("DIAG", "0"))
XP = os.environ.get("XP", "")

def f2u(x):
    return struct.unpack("<I", struct.pack("<f", x))[0]

jobs = []
for j in range(4):
    jobs.append((964, 1456, 16, 4 * j, 964 + 128 * j, min(964 + 128 * (j + 1), 1456), 0))
for qo, qe, s0 in zip((0, 128, 256, 352), (128, 256, 352, 448), (0, 4, 7, 11)):
    jobs.append((516, 964, 14, s0, 516 + qo, 516 + qe, 0))
for qo, qe, s0 in zip((0, 128, 224, 320), (128, 224, 320, 400), (0, 3, 7, 10)):
    jobs.append((0, 400, 13, s0, qo, qe, 0))
jobs.append((1456, 1702, 8, 0, 1456, 1702, 1))
jobs.append((2021, 2266, 8, 0, 2021, 2266, 1))
jobs.append((1702, 1900, 7, 0, 1702, 1900, 1))
jobs.append((400, 516, 8, 0, 400, 516, 2))
DUAL_B = (1900, 2021)
if "norot" in XP:
    jobs = [(a, b, c, 0, e_, f, g) for (a, b, c, d, e_, f, g) in jobs]
assert len(jobs) == 16

out = []
def e(s=""):
    out.append("    " + s if s and not s.endswith(":") else s)
def lab(s):
    out.append(s + ":")

S_Q, S_K, S_V, S_O = 4, 6, 8, 12
SRD_Q, SRD_K, SRD_V, SRD_O = 16, 20, 24, 28
s_w0, s_w1 = 32, 33
s_abase, s_aend, s_NB, s_sig0, s_mode = 34, 35, 36, 37, 38
s_wave, s_head256, s_q0, s_qend = 39, 40, 41, 42
s_t, s_t2, s_t3, s_job = 43, 44, 45, 46
s_nu, s_it, s_maskit, s_kv, s_need, s_land = 47, 48, 49, 50, 51, 52
s_kp, s_vp, s_j0 = 53, 54, 55
s_n, s_rowK, s_rowV, s_mK, s_mV, s_posted, s_free = 56, 57, 58, 59, 60, 61, 62
s_p0, s_p1, s_p2, s_p3 = 63, 64, 65, 66
s_rowEnd, s_rowBeg, s_off, s_limA, s_limB, s_pv = 67, 68, 69, 70, 71, 72
s_qs = 73
s_ti = 74

v_lane, v_h4, v_kbase, v_vbase, v_ka, v_va = 1, 2, 3, 4, 5, 6
v_l, v_sum, v_negm, v_ninf, v_ctl, v_prog, v_flag, v_pa = 7, 8, 9, 10, 11, 12, 13, 14
v_dk, v_dv = 5, 6
VT = 232
VQ, VO = 16, 48
VS = [112, 128]
VP = [144, 152]
VC0 = 160
VKF, VVF = 176, 208
VT = 240
VE_ = 252
NVGPR = 256
VL = 176
VSTAMP = 15

def vr(b, n): return f"v[{b}:{b+n-1}]"
def sr(b, n): return f"s[{b}:{b+n-1}]"

def stamp(real=False):
    if not DIAG: return
    op = "s_memrealtime" if real else "s_memtime"
    e(f"{op} s[82:83]")
    e("s_waitcnt lgkmcnt(0)")
    e("s_mov_b32 m0, s84")
    e(f"v_writelane_b32 v{VSTAMP}, s82, m0")
    e("s_add_u32 s84, s84, 1")
def dump_stamps():
    if not DIAG: return
    e("s_load_dwordx2 s[82:83], s[0:1], 48")
    e("s_waitcnt lgkmcnt(0)")
    e(f"s_lshl_b32 s{s_t}, s2, 3")
    e(f"s_add_u32 s{s_t}, s{s_t}, s{s_wave}")
    e(f"s_lshl_b32 s{s_t}, s{s_t}, 8")
    e(f"s_add_u32 s82, s82, s{s_t}")
    e("s_addc_u32 s83, s83, 0")
    e(f"v_lshlrev_b32 v0, 2, v{v_lane}")
    e(f"global_store_dword v0, v{VSTAMP}, s[82:83]")

class Lgkm:
    def __init__(self):
        self.q = []
    def issue(self, name):
        self.q.append(name)
        assert len(self.q) <= 15, f"too many LDS ops outstanding {self.q}"
    def need(self, name):
        if name in self.q:
            i = self.q.index(name)
            n = len(self.q) - i - 1
            e(f"s_waitcnt lgkmcnt({n})")
            self.q = self.q[i + 1:]
    def drain(self):
        e("s_waitcnt lgkmcnt(0)")
        self.q = []
lg = Lgkm()

ool = []

def k_read(s, koff):
    e(f"ds_read_b128 {vr(VKF+4*s,4)}, v{v_ka} offset:{koff+16*s}")
    lg.issue(f"K{s}")
def v_read(f, jj, voff):
    dt, t = f & 3, f >> 2
    e(f"ds_read_b64_tr_b16 {vr(VVF+4*f+2*jj,2)}, v{v_va} offset:{voff+(2*t+jj)*256+64*dt}")
    lg.issue(f"V{f}{jj}")
def qk_mfma(s, dst, c0):
    c = c0 if s == 0 else vr(dst, 16)
    e(f"v_mfma_f32_32x32x16_bf16 {vr(dst,16)}, {vr(VKF+4*s,4)}, {vr(VQ+4*s,4)}, {c}")
def pv_mfma(f, P):
    dt, t = f & 3, f >> 2
    e(f"v_mfma_f32_32x32x16_bf16 {vr(VO+16*dt,16)}, {vr(VVF+4*f,4)}, {vr(P+4*t,4)}, {vr(VO+16*dt,16)}")

def max_chain(S):
    t = VT
    return [
        f"v_max3_f32 v{t}, v{S+0}, v{S+1}, v{S+2}",
        f"v_max3_f32 v{t+1}, v{S+3}, v{S+4}, v{S+5}",
        f"v_max3_f32 v{t+2}, v{S+6}, v{S+7}, v{S+8}",
        f"v_max3_f32 v{t+3}, v{S+9}, v{S+10}, v{S+11}",
        f"v_max3_f32 v{t+4}, v{S+12}, v{S+13}, v{S+14}",
        f"v_max3_f32 v{t}, v{t}, v{t+1}, v{S+15}",
        f"v_max3_f32 v{t+2}, v{t+2}, v{t+3}, v{t+4}",
        f"v_max_f32 v{t}, v{t}, v{t+2}",
        f"v_mov_b32 v{t+1}, v{t}",
        "s_nop 1",
        f"v_permlane32_swap_b32 v{t}, v{t+1}",
        f"v_max_f32 v{t}, v{t}, v{t+1}",
    ]

def mask_code(S):
    b = [f"    v_sub_u32 v{VT}, s{s_kv}, v{v_h4}"]
    for r0 in range(0, 16, 4):
        for r in range(r0, r0 + 4):
            c = (r & 3) + 8 * (r >> 2)
            b.append(f"    v_cmp_lt_i32 s[{86+2*(r&3)}:{87+2*(r&3)}], {c}, v{VT}")
        for r in range(r0, r0 + 4):
            b.append(f"    v_cndmask_b32 v{S+r}, v{v_ninf}, v{S+r}, s[{86+2*(r&3)}:{87+2*(r&3)}]")
    return b

def plain_exp(S, P):
    b = []
    for k in range(0, 16, 2):
        b.append(f"    v_exp_f32 v{VE_}, v{S+k}")
        b.append(f"    v_exp_f32 v{VE_+1}, v{S+k+1}")
        b.append("    s_nop 0")
        if k == 0:
            b.append(f"    v_add_f32 v{v_sum}, v{VE_}, v{VE_+1}")
        else:
            b.append(f"    v_add_f32 v{v_sum}, v{v_sum}, v{VE_}")
            b.append(f"    v_add_f32 v{v_sum}, v{v_sum}, v{VE_+1}")
        b.append(f"    v_cvt_pk_bf16_f32 v{P+k//2}, v{VE_}, v{VE_+1}")
    return b

def adv(reg, step, end, vdst, vbase):
    return [f"s_add_u32 s{reg}, s{reg}, {step}",
            f"s_cmp_eq_u32 s{reg}, {end}",
            f"s_cselect_b32 s{reg}, 0, s{reg}",
            f"v_add_u32 v{vdst}, s{reg}, v{vbase}"]

COST = {"v_exp": 8, "v_cvt": 5}
def cost(x):
    for k, v in COST.items():
        if x.startswith(k): return v
    return 4

def body(par, has_pv, tag, budget=24):
    Sc, Sn = VS[par], VS[1 - par]
    Pc, Pp = VP[par], VP[1 - par]
    koff = 0 if par == 0 else KBLK
    voff = VBLK if par == 0 else 0
    if DIAG >= 2:
        sv = list(lg.q); stamp(); lg.q = sv
    E = lambda k: VE_ + (k & 3)
    seq = []
    for k in range(16):
        seq.append(f"v_exp_f32 v{E(k)}, v{Sc+k}")
        if k == 2:
            seq.append(f"v_add_f32 v{v_sum}, v{E(0)}, v{E(1)}")
        elif k >= 3:
            seq.append(f"v_add_f32 v{v_sum}, v{v_sum}, v{E(k-1)}")
        if k >= 2 and k % 2 == 0:
            seq.append(f"v_cvt_pk_bf16_f32 v{Pc+(k-2)//2}, v{E(k-2)}, v{E(k-1)}")
    seq.append(f"v_add_u32 v{v_prog}, 1, v{v_prog}")
    seq.append(f"v_add_f32 v{v_sum}, v{v_sum}, v{E(15)}")
    seq.append(f"v_cvt_pk_bf16_f32 v{Pc+7}, v{E(14)}, v{E(15)}")
    seq.append(f"v_cmp_lt_f32 vcc, {f2u(SUMTHR):#x}, v{v_sum}")
    kgap = {10: [0, 1], 11: [2, 3], 12: [4], 13: [5], 14: [6], 15: [7]}
    si = 0
    cum = 0
    BUD = float(os.environ.get("BUD", "26.5"))
    for g in range(16):
        used = cum
        if g < 8:
            if g == 0: lg.need("K3"); used += 4
            if g == 4: lg.need("K7"); used += 4
            qk_mfma(g, Sn, vr(VC0, 16))
        else:
            f = g - 8
            if has_pv:
                if f == 0: lg.need("V31"); used += 4
                if f == 4: lg.need("V71"); used += 4
                pv_mfma(f, Pp)
            else:
                if f == 0: lg.need("F")
        if g == 0:
            e(f"ds_read_b32 v{v_flag}, v{v_ctl}"); lg.issue("F"); used += 4
        if has_pv and 2 <= g <= 9:
            v_read(g - 2, 0, voff); v_read(g - 2, 1, voff); used += 8
        for sk in kgap.get(g, []):
            k_read(sk, koff); used += 4
        if g == 15:
            e(f"ds_write_b32 v{v_pa}, v{v_prog}"); lg.issue("W"); used += 4
        tail = []
        if g == 8:
            e(f"v_readfirstlane_b32 s{s_land}, v{v_flag}"); used += 4
        if g == 9:
            tail += [f"s_cmp_ge_u32 s{s_land}, s{s_it}", f"s_cbranch_scc0 L_poll_{tag}", f"L_polldone_{tag}:"]; used += 10
            ool.append([f"L_poll_{tag}:",
                        f"    ds_read_b32 v{v_flag}, v{v_ctl}",
                        "    s_waitcnt lgkmcnt(0)",
                        f"    v_readfirstlane_b32 s{s_land}, v{v_flag}",
                        f"    s_cmp_ge_u32 s{s_land}, s{s_it}",
                        f"    s_cbranch_scc1 L_polldone_{tag}",
                        "    s_sleep 1",
                        f"    s_branch L_poll_{tag}"])
        if g == 10 and par == 0:
            tail += adv(s_vp, 2 * VBLK, NSLOT * VBLK, v_va, v_vbase)[:3]; used += 12
        if g == 11 and par == 0:
            tail += adv(s_vp, 2 * VBLK, NSLOT * VBLK, v_va, v_vbase)[3:]; used += 4
        if g == 12:
            tail += [f"s_add_u32 s{s_it}, s{s_it}, 1"]; used += 4
        if g == 13 and par == 1:
            tail += adv(s_kp, 2 * KBLK, NSLOT * KBLK, v_ka, v_kbase)[:3]; used += 12
        remaining_gaps = 14 - g
        while si < len(seq) and (used + cost(seq[si]) * 0.5 <= BUD * (g + 1) or g == 14):
            e(seq[si]); used += cost(seq[si]); si += 1
        cum = used
        for x in tail:
            if x.endswith(":"): out.append(x)
            else: e(x)
    assert si == len(seq)
    if par == 1:
        e(adv(s_kp, 2 * KBLK, NSLOT * KBLK, v_ka, v_kbase)[3])
    e(f"s_cbranch_vccnz L_ovf_{tag}")
    lab(f"L_ovfdone_{tag}")
    e(f"v_add_f32 v{v_l}, v{v_l}, v{v_sum}")
    r = [f"L_ovf_{tag}:", "    s_nop 7", "    s_nop 7"]
    r += ["    " + x for x in max_chain(Sc)]
    r += [f"    v_max_f32 v{VT}, 0, v{VT}",
          f"    v_sub_f32 v{VT+1}, 0, v{VT}",
          f"    v_exp_f32 v{VT+1}, v{VT+1}",
          f"    v_sub_f32 v{v_negm}, v{v_negm}, v{VT}"]
    for k in range(16):
        r.append(f"    v_sub_f32 v{Sc+k}, v{Sc+k}, v{VT}")
        r.append(f"    v_sub_f32 v{Sn+k}, v{Sn+k}, v{VT}")
        r.append(f"    v_mov_b32 v{VC0+k}, v{v_negm}")
    for k in range(64):
        r.append(f"    v_mul_f32 v{VO+k}, v{VT+1}, v{VO+k}")
    r.append(f"    v_mul_f32 v{v_l}, v{VT+1}, v{v_l}")
    r += plain_exp(Sc, Pc)
    r.append(f"    s_branch L_ovfdone_{tag}")
    ool.append(r)

def event(par_next, tag, fin, cont):
    ool.append([f"L_ev_{tag}:",
                f"    s_cmp_eq_u32 s{s_it}, s{s_nu}",
                f"    s_cbranch_scc1 {fin}",
                f"    s_mov_b32 s{s_maskit}, s{s_nu}"] + mask_code(VS[par_next]) + [f"    s_branch {cont}"])

def final_pv(par_last, tag):
    P = VP[par_last]
    voff = VBLK if (1 - par_last) == 0 else 0
    lg.drain()
    for f in range(7):
        v_read(f, 0, voff); v_read(f, 1, voff)
    for f in range(8):
        lg.need(f"V{f}1")
        pv_mfma(f, P)
        if f == 0:
            v_read(7, 0, voff); v_read(7, 1, voff)

out.append(f"; @launch grid=(256,1,1) block=(512,1,1) lds={LDS_BYTES}")
out.append('.amdgcn_target "amdgcn-amd-amdhsa--gfx950"')
out.append(".text")
out.append(f".globl {NAME}_kernel")
out.append(".p2align 8")
out.append(f".type {NAME}_kernel,@function")
lab(f"{NAME}_kernel")
e("s_cmp_ge_u32 s2, 256")
e("s_cbranch_scc1 L_end")
if DIAG:
    e("s_mov_b32 s84, 0"); e(f"v_mov_b32 v{VSTAMP}, 0")
stamp(True); stamp()
if "dbg" in XP:
    e("s_memrealtime s[76:77]")
    e("s_memtime s[78:79]")
e(f"v_lshrrev_b32 v{VT}, 6, v0")
e(f"v_mov_b32 v{v_ctl}, {CTL}")
e(f"v_mov_b32 v{v_flag}, 0")
e(f"v_lshl_add_u32 v{v_pa}, v{VT}, 2, v{v_ctl}")
e(f"ds_write_b32 v{v_ctl}, v{v_flag}")
e(f"ds_write_b32 v{v_pa}, v{v_flag} offset:16")
e(f"v_add_u32 v{v_pa}, 16, v{v_pa}")
e(f"v_and_b32 v{v_lane}, 63, v0")
e(f"v_readfirstlane_b32 s{s_wave}, v{VT}")
e("s_waitcnt lgkmcnt(0)")
e("s_load_dwordx8 s[4:11], s[0:1], 0")
e("s_load_dwordx2 s[12:13], s[0:1], 32")
e("s_barrier")
e(f"s_and_b32 s{s_t}, s2, 7")
e(f"s_lshl_b32 s{s_t}, s{s_t}, 1")
e(f"s_bfe_u32 s{s_t2}, s2, 0x10003")
e(f"s_add_u32 s{s_t}, s{s_t}, s{s_t2}")
e(f"s_lshl_b32 s{s_head256}, s{s_t}, 8")
e(f"s_lshr_b32 s{s_job}, s2, 4")
def pack(j):
    a, b, nb, s0, q, qe, mode = jobs[j]
    w0 = a | (b << 12) | (s0 << 24) | (mode << 28)
    w1 = q | (qe << 12) | (nb << 24)
    return w0, w1
w0, w1 = pack(0)
e(f"s_mov_b32 s{s_w0}, {w0:#x}")
e(f"s_mov_b32 s{s_w1}, {w1:#x}")
for j in range(1, 16):
    w0, w1 = pack(j)
    e(f"s_cmp_eq_u32 s{s_job}, {j}")
    e(f"s_cselect_b32 s{s_w0}, {w0:#x}, s{s_w0}")
    e(f"s_cselect_b32 s{s_w1}, {w1:#x}, s{s_w1}")
e(f"s_and_b32 s{s_abase}, s{s_w0}, 0xfff")
e(f"s_bfe_u32 s{s_aend}, s{s_w0}, 0xc000c")
e(f"s_bfe_u32 s{s_sig0}, s{s_w0}, 0x40018")
e(f"s_lshr_b32 s{s_mode}, s{s_w0}, 28")
e(f"s_and_b32 s{s_q0}, s{s_w1}, 0xfff")
e(f"s_bfe_u32 s{s_qend}, s{s_w1}, 0xc000c")
e(f"s_lshr_b32 s{s_NB}, s{s_w1}, 24")
e(f"s_add_u32 s{s_ti}, s{s_wave}, 7")
e(f"s_and_b32 s{s_ti}, s{s_ti}, 7")
e(f"s_lshl_b32 s{s_t}, s{s_ti}, 5")
e(f"s_add_u32 s{s_q0}, s{s_q0}, s{s_t}")
e(f"s_lshr_b32 s{s_t2}, s{s_ti}, 2")
e(f"s_lshl_b32 s{s_t3}, s{s_t2}, 2")
e(f"s_add_u32 s{s_t3}, s{s_t3}, s{s_mode}")
e(f"s_mov_b32 s{s_nu}, s{s_NB}")
e(f"s_mov_b32 s{s_j0}, 0")
e(f"s_sub_u32 s{s_kv}, s{s_aend}, s{s_abase}")
e(f"s_cmp_eq_u32 s{s_mode}, 2")
e(f"s_cselect_b32 s{s_nu}, 4, s{s_nu}")
e(f"s_add_u32 s{s_t}, s{s_t}, {DUAL_B[0]-128}")
e(f"s_cmp_eq_u32 s{s_t3}, 6")
e(f"s_cselect_b32 s{s_q0}, s{s_t}, s{s_q0}")
e(f"s_cselect_b32 s{s_qend}, {DUAL_B[1]}, s{s_qend}")
e(f"s_cselect_b32 s{s_j0}, 4, s{s_j0}")
e(f"s_cselect_b32 s{s_kv}, {DUAL_B[1]-DUAL_B[0]}, s{s_kv}")
e(f"s_cmp_eq_u32 s{s_t3}, 4")
e(f"s_cselect_b32 s{s_qend}, 0, s{s_qend}")
e(f"v_and_b32 v{VT+4}, 31, v{v_lane}")
e(f"v_lshrrev_b32 v{VT+5}, 5, v{v_lane}")
e(f"v_lshrrev_b32 v{VT}, 4, v{v_lane}")
e(f"v_and_b32 v{VT+1}, 15, v{v_lane}")
e(f"v_lshlrev_b32 v{VT+2}, 15, v{VT}")
e(f"v_lshl_add_u32 v{v_dv}, v{VT+1}, 4, v{VT+2}")
e(f"v_and_b32 v{VT+3}, 1, v{VT}")
e(f"v_lshlrev_b32 v{VT+3}, 7, v{VT+3}")
e(f"v_xor_b32 v{v_dk}, v{v_dv}, v{VT+3}")
e(f"s_mul_i32 s{s_qs}, s{s_ti}, {VBLK}")
e(f"s_add_u32 s{s_qs}, s{s_qs}, {VRING+4*VBLK}")
e(f"s_mul_i32 s{s_t}, s{s_ti}, {KBLK}")
e(f"s_cmp_ge_u32 s{s_ti}, 4")
e(f"s_cselect_b32 s{s_qs}, s{s_t}, s{s_qs}")
def srd_rows(dst, ptr, rowreg, endreg):
    e(f"s_lshl_b32 s{s_t}, s{rowreg}, 12")
    e(f"s_add_u32 s{s_t}, s{s_t}, s{s_head256}")
    e(f"s_add_u32 s{dst}, s{ptr}, s{s_t}")
    e(f"s_addc_u32 s{dst+1}, s{ptr+1}, 0")
    e(f"s_sub_i32 s{s_t}, s{endreg}, s{rowreg}")
    e(f"s_lshl_b32 s{s_t}, s{s_t}, 12")
    e(f"s_sub_i32 s{s_t}, s{s_t}, {4096-256}")
    e(f"s_max_i32 s{dst+2}, s{s_t}, 0")
    e(f"s_mov_b32 s{dst+3}, 0x00020000")
e(f"s_lshl_b32 s{s_t2}, s{s_q0}, 12")
e(f"s_add_u32 s{s_t2}, s{s_t2}, s{s_head256}")
e(f"s_sub_i32 s{s_t}, s{s_qend}, s{s_q0}")
e(f"s_lshl_b32 s{s_t}, s{s_t}, 12")
e(f"s_sub_i32 s{s_t}, s{s_t}, {4096-256}")
e(f"s_max_i32 s{SRD_Q+2}, s{s_t}, 0")
e(f"s_mov_b32 s{SRD_Q+3}, 0x00020000")
e(f"s_mov_b32 s{SRD_O+2}, s{SRD_Q+2}")
e(f"s_mov_b32 s{SRD_O+3}, 0x00020000")
e("s_waitcnt lgkmcnt(0)")
stamp()
e(f"s_add_u32 s{SRD_Q}, s{S_Q}, s{s_t2}")
e(f"s_addc_u32 s{SRD_Q+1}, s{S_Q+1}, 0")
def q_dma(tag):
    e(f"s_cmp_lt_u32 s{s_q0}, s{s_qend}")
    e(f"s_cbranch_scc0 L_noq{tag}")
    for u in range(8):
        e(f"s_add_u32 m0, s{s_qs}, {u*KPAD}")
        e(f"s_mov_b32 s{s_t}, {u*ROWB}")
        e(f"buffer_load_dwordx4 v{v_dk}, {sr(SRD_Q,4)}, s{s_t} offen lds")
    lab(f"L_noq{tag}")
e(f"s_add_u32 s{SRD_O}, s{S_O}, s{s_t2}")
e(f"s_addc_u32 s{SRD_O+1}, s{S_O+1}, 0")
e(f"s_cmp_eq_u32 s{s_wave}, 0")
e("s_cbranch_scc1 L_loader")
q_dma("c")
def kbase_calc():
    e(f"v_and_b32 v{VT+7}, 7, v{VT+4}")
    e(f"v_mul_u32_u24 v{v_kbase}, {KPAD}, v{VT+7}")
    e(f"v_lshrrev_b32 v{VT+7}, 3, v{VT+4}")
    e(f"v_lshl_add_u32 v{v_kbase}, v{VT+7}, 8, v{v_kbase}")
    e(f"v_and_b32 v{VT+7}, 1, v{VT+7}")
    e(f"v_xor_b32 v{VT+7}, v{VT+7}, v{VT+5}")
    e(f"v_lshl_add_u32 v{v_kbase}, v{VT+7}, 7, v{v_kbase}")
    e(f"v_add_u32 v{VT+6}, s{s_qs}, v{v_kbase}")
kbase_calc()
def q_fetch(wait):
    e(f"s_waitcnt vmcnt({wait})")
    for k in range(8):
        e(f"ds_read_b128 {vr(VQ+4*k,4)}, v{VT+6} offset:{16*k}")
    e(f"v_mov_b32 v{v_prog}, 1")
    e("s_waitcnt lgkmcnt(0)")
    e(f"ds_write_b32 v{v_pa}, v{v_prog}")
def ctl_init():
    pass
lab("L_compute")
e(f"s_cmp_lt_u32 s{s_q0}, s{s_qend}")
e("s_cbranch_scc0 L_idle")
if "prio" in XP: e("s_setprio 2")
e(f"v_lshlrev_b32 v{v_h4}, 2, v{VT+5}")
e(f"v_bfe_u32 v{VT+7}, v{v_lane}, 2, 2")
e(f"v_add_u32 v{VT+7}, v{VT+7}, v{v_h4}")
e(f"v_mul_u32_u24 v{v_vbase}, {VPAD}, v{VT+7}")
e(f"v_and_b32 v{VT+7}, 1, v{v_lane}")
e(f"v_lshl_add_u32 v{v_vbase}, v{VT+7}, 5, v{v_vbase}")
e(f"v_bfe_u32 v{VT+7}, v{v_lane}, 4, 1")
e(f"v_lshl_add_u32 v{v_vbase}, v{VT+7}, 4, v{v_vbase}")
e(f"v_bfe_u32 v{VT+7}, v{v_lane}, 1, 1")
e(f"v_lshl_add_u32 v{v_vbase}, v{VT+7}, 3, v{v_vbase}")
e(f"v_add_u32 v{v_vbase}, {VRING}, v{v_vbase}")
e(f"v_mov_b32 v{v_ninf}, 0xff800000")
e(f"v_mov_b32 v{v_l}, 0")
for k in range(64):
    e(f"v_mov_b32 v{VO+k}, 0")
e(f"s_sub_u32 s{s_t}, s{s_nu}, 1")
e(f"s_sub_u32 s{s_maskit}, s{s_t}, s{s_sig0}")
e(f"s_lshl_b32 s{s_t}, s{s_t}, 5")
e(f"s_sub_u32 s{s_kv}, s{s_kv}, s{s_t}")
e(f"s_cmp_ge_u32 s{s_kv}, 32")
e(f"s_cselect_b32 s{s_maskit}, s{s_nu}, s{s_maskit}")
e(f"s_add_u32 s{s_it}, s{s_j0}, 4")
e(f"s_add_u32 s{s_maskit}, s{s_maskit}, s{s_it}")
e(f"s_add_u32 s{s_nu}, s{s_nu}, s{s_it}")
e(f"s_mul_i32 s{s_kp}, s{s_j0}, {KBLK}")
e(f"s_mul_i32 s{s_vp}, s{s_j0}, {VBLK}")
e(f"v_add_u32 v{v_ka}, s{s_kp}, v{v_kbase}")
e(f"v_add_u32 v{v_va}, s{s_vp}, v{v_vbase}")
e(f"s_add_u32 s{s_need}, s{s_j0}, 3")
e(f"s_cmp_eq_u32 s{s_j0}, 0")
e(f"s_cselect_b32 s{s_t3}, 2, s{s_need}")
stamp()
e(f"s_cmp_eq_u32 s{s_wave}, 0")
e("s_cbranch_scc1 L_qdone")
q_fetch(0)
lab("L_qdone")
e(f"s_mov_b32 s86, {f2u(CSCALE):#x}")
e(f"s_mov_b32 s87, {f2u(CSCALE):#x}")
e(f"s_mov_b32 s{s_t2}, 0xffff0000")
for s in range(8):
    for k in range(4):
        q = VQ + 4 * s + k
        e(f"v_lshlrev_b32 v{VT+2*k}, 16, v{q}")
        e(f"v_and_b32 v{VT+2*k+1}, s{s_t2}, v{q}")
    for k in range(8):
        e(f"v_mul_f32 v{VT+k}, s86, v{VT+k}")
    for k in range(4):
        q = VQ + 4 * s + k
        e(f"v_cvt_pk_bf16_f32 v{q}, v{VT+2*k}, v{VT+2*k+1}")
stamp()
lab("L_poll_pre")
e(f"ds_read_b32 v{v_flag}, v{v_ctl}")
e("s_waitcnt lgkmcnt(0)")
e(f"v_readfirstlane_b32 s{s_land}, v{v_flag}")
e(f"s_cmp_ge_u32 s{s_land}, s{s_t3}")
e("s_cbranch_scc1 L_poll_pre_done")
e("s_sleep 1")
e("s_branch L_poll_pre")
lab("L_poll_pre_done")
stamp()
lg.q = []
for s in range(8):
    k_read(s, 0)
for s in range(8):
    lg.need(f"K{s}")
    qk_mfma(s, VS[0], "0")
for s in range(8):
    k_read(s, KBLK)
for x in adv(s_kp, 2 * KBLK, NSLOT * KBLK, v_ka, v_kbase): e(x)
e("s_nop 7")
e(f"s_cmp_eq_u32 s{s_it}, s{s_maskit}")
e("s_cbranch_scc1 L_mask_pre")
lab("L_maskdone_pre")
ool.append(["L_mask_pre:", f"    s_mov_b32 s{s_maskit}, s{s_nu}"] + mask_code(VS[0]) + ["    s_branch L_maskdone_pre"])
for x in max_chain(VS[0]): e(x)
e(f"v_sub_f32 v{v_negm}, 0, v{VT}")
for k in range(16):
    e(f"v_sub_f32 v{VS[0]+k}, v{VS[0]+k}, v{VT}")
for k in range(16):
    e(f"v_mov_b32 v{VC0+k}, v{v_negm}")
lg.drain()
stamp()
body(0, False, "i0")
lg.drain()
e(f"s_mul_i32 s{s_vp}, s{s_j0}, {VBLK}")
e(f"v_add_u32 v{v_va}, s{s_vp}, v{v_vbase}")
stamp()
steady = [f"K{s}" for s in range(8)] + ["W"]
e(f"s_cmp_eq_u32 s{s_it}, s{s_maskit}")
e("s_cbranch_scc1 L_ev_even")
lab("L_loop")
lg.q = list(steady)
body(1, True, "odd")
assert lg.q == steady, lg.q
e(f"s_cmp_eq_u32 s{s_it}, s{s_maskit}")
e("s_cbranch_scc1 L_ev_odd")
lab("L_loop_mid")
body(0, True, "even")
assert lg.q == steady, lg.q
e(f"s_cmp_lg_u32 s{s_it}, s{s_maskit}")
e("s_cbranch_scc1 L_loop")
e("s_branch L_ev_even")
event(0, "odd", "L_fin_odd", "L_loop_mid")
event(1, "even", "L_fin_even", "L_loop")
lab("L_fin_even")
stamp()
lg.q = list(steady)
final_pv(0, "e")
e("s_branch L_epi")
lab("L_fin_odd")
stamp()
lg.q = list(steady)
final_pv(1, "o")
lab("L_epi")
e(f"v_mov_b32 v{VT+1}, v{v_l}")
e("s_nop 1")
e(f"v_permlane32_swap_b32 v{v_l}, v{VT+1}")
e(f"v_add_f32 v{v_l}, v{v_l}, v{VT+1}")
e(f"v_rcp_f32 v{VT+2}, v{v_l}")
va_tw, va_tr, va_st = VT + 8, VT + 9, VT + 10
e(f"s_mul_i32 s{s_t}, s{s_wave}, {SCRW}")
e(f"s_add_u32 s{s_t}, s{s_t}, {SCR}")
e(f"v_and_b32 v{VT}, 31, v{v_lane}")
e(f"v_mul_u32_u24 v{va_tw}, {SROW}, v{VT}")
e(f"v_lshl_add_u32 v{va_tw}, v{v_h4}, 3, v{va_tw}")
e(f"v_add_u32 v{va_tw}, s{s_t}, v{va_tw}")
e(f"v_lshrrev_b32 v{VT}, 2, v{v_lane}")
e(f"v_and_b32 v{VT+1}, 3, v{v_lane}")
e(f"v_mul_u32_u24 v{va_tr}, {SROW}, v{VT}")
e(f"v_lshl_add_u32 v{va_tr}, v{VT+1}, 4, v{va_tr}")
e(f"v_add_u32 v{va_tr}, s{s_t}, v{va_tr}")
e(f"v_lshlrev_b32 v{va_st}, 12, v{VT}")
e(f"v_lshl_add_u32 v{va_st}, v{VT+1}, 4, v{va_st}")
e(f"s_mov_b32 s{s_t2}, {16*ROWB}")
e("s_nop 3")
def norm(dt):
    for k in range(16):
        e(f"v_mul_f32 v{VO+16*dt+k}, v{VT+2}, v{VO+16*dt+k}")
    for k in range(8):
        e(f"v_cvt_pk_bf16_f32 v{VKF+8*dt+k}, v{VO+16*dt+2*k}, v{VO+16*dt+2*k+1}")
norm(0)
for dt in range(4):
    e(f"ds_write_b128 v{va_tw}, {vr(VKF+8*dt,4)}")
    e(f"ds_write_b128 v{va_tw}, {vr(VKF+8*dt+4,4)} offset:16")
    e("s_waitcnt lgkmcnt(0)")
    e(f"ds_read_b128 {vr(VVF+8*dt,4)}, v{va_tr}")
    e(f"ds_read_b128 {vr(VVF+8*dt+4,4)}, v{va_tr} offset:{16*SROW}")
    if dt < 3:
        norm(dt + 1)
    e("s_waitcnt lgkmcnt(0)")
    e(f"buffer_store_dwordx4 {vr(VVF+8*dt,4)}, v{va_st}, {sr(SRD_O,4)}, 0 offen offset:{64*dt}")
    e(f"buffer_store_dwordx4 {vr(VVF+8*dt+4,4)}, v{va_st}, {sr(SRD_O,4)}, s{s_t2} offen offset:{64*dt}")
lab("L_exit")
if "dbg" in XP:
    e("s_waitcnt vmcnt(0)")
    e("s_memrealtime s[92:93]")
    e("s_memtime s[94:95]")
    e("s_load_dwordx2 s[82:83], s[0:1], 40")
    e("s_waitcnt lgkmcnt(0)")
    e("s_and_b32 s80, s2, 31")
    e(f"s_lshl_b32 s81, s{s_wave}, 8")
    e("s_add_u32 s80, s80, s81")
    e(f"s_cmp_eq_u32 s80, {8 + 4*256}")
    e("s_cbranch_scc0 L_nodbg")
    e("s_lshr_b32 s80, s2, 5")
    e("s_lshl_b32 s80, s80, 3")
    e("v_mov_b32 v20, s80")
    e("v_mov_b32 v22, s76")
    e("v_mov_b32 v23, s92")
    e("s_mov_b64 exec, 1")
    e("global_store_dwordx2 v20, v[22:23], s[82:83]")
    lab("L_nodbg")
if DIAG:
    e("s_waitcnt vmcnt(0)")
stamp(); stamp(True)
dump_stamps()
lab("L_end")
e("s_endpgm")

lab("L_idle")
e(f"v_mov_b32 v{v_prog}, 0x7fffffff")
e(f"ds_write_b32 v{v_pa}, v{v_prog}")
e("s_branch L_exit")
lab("L_loader")
e(f"v_mov_b32 v{VL+11}, {CTL+16}")
for u in range(8):
    e(f"v_add_u32 v{VL+16+u}, {u*ROWB-(u&3)*KPAD}, v{v_dk}")
    e(f"v_add_u32 v{VL+24+u}, {u*ROWB-(u&3)*VPAD}, v{v_dv}")
e(f"s_add_u32 s{SRD_K}, s{S_K}, s{s_head256}")
e(f"s_addc_u32 s{SRD_K+1}, s{S_K+1}, 0")
e(f"s_add_u32 s{SRD_V}, s{S_V}, s{s_head256}")
e(f"s_addc_u32 s{SRD_V+1}, s{S_V+1}, 0")
e(f"s_lshl_b32 s{s_limA}, s{s_aend}, 12")
e(f"s_sub_u32 s{s_limA}, s{s_limA}, {4096-256}")
e(f"s_mov_b32 s{s_limB}, {(DUAL_B[1]-1)*4096+256}")
e(f"s_mov_b32 s{SRD_K+2}, s{s_limA}")
e(f"s_mov_b32 s{SRD_V+2}, s{s_limA}")
e(f"s_mov_b32 s{SRD_K+3}, 0x00020000")
e(f"s_mov_b32 s{SRD_V+3}, 0x00020000")
e(f"s_lshl_b32 s{s_rowBeg}, s{s_abase}, 12")
e(f"s_lshl_b32 s{s_t}, s{s_sig0}, 17")
e(f"s_add_u32 s{s_rowK}, s{s_rowBeg}, s{s_t}")
e(f"s_mov_b32 s{s_rowV}, s{s_rowK}")
e(f"s_lshl_b32 s{s_t}, s{s_NB}, 17")
e(f"s_add_u32 s{s_rowEnd}, s{s_rowBeg}, s{s_t}")
e(f"s_cmp_eq_u32 s{s_mode}, 2")
e(f"s_cselect_b32 s{s_rowEnd}, {(400+128)*4096}, s{s_rowEnd}")
e(f"s_cselect_b32 s{s_rowBeg}, {DUAL_B[0]*4096}, s{s_rowBeg}")
e(f"s_cselect_b32 s{s_limB}, s{s_limB}, s{s_limA}")
e(f"s_mov_b32 s{s_mK}, {KRING}")
e(f"s_mov_b32 s{s_mV}, {VRING}")
e(f"s_mov_b32 s{s_n}, 0")
e(f"s_mov_b32 s{s_posted}, 0")
e(f"s_mov_b32 s{s_free}, 0")
for p in (s_p0, s_p1, s_p2, s_p3):
    e(f"s_mov_b32 s{p}, 0")
e(f"s_mov_b32 s{s_pv}, 0")

def post_from(reg):
    e(f"s_max_u32 s{s_posted}, s{s_posted}, s{reg}")
    e(f"v_mov_b32 v{VL+8}, s{s_posted}")
    e(f"ds_write_b32 v{v_ctl}, v{VL+8}")

def wait_free(needreg, tag):
    e(f"s_cmp_ge_i32 s{s_free}, s{needreg}")
    e(f"s_cbranch_scc1 L_free_{tag}")
    e("s_waitcnt vmcnt(0)")
    post_from(s_pv)
    lab(f"L_spin_{tag}")
    e(f"ds_read_b128 {vr(VL+4,4)}, v{VL+11}")
    e(f"ds_read_b128 {vr(VL+12,4)}, v{VL+11} offset:16")
    e("s_waitcnt lgkmcnt(0)")
    e(f"v_min3_u32 v{VL+4}, v{VL+4}, v{VL+5}, v{VL+6}")
    e(f"v_min3_u32 v{VL+12}, v{VL+12}, v{VL+13}, v{VL+14}")
    e(f"v_min3_u32 v{VL+4}, v{VL+4}, v{VL+7}, v{VL+15}")
    e(f"v_min_u32 v{VL+4}, v{VL+4}, v{VL+12}")
    e("s_nop 0")
    e(f"v_readfirstlane_b32 s{s_free}, v{VL+4}")
    e(f"s_cmp_ge_i32 s{s_free}, s{needreg}")
    e(f"s_cbranch_scc1 L_free_{tag}")
    e("s_sleep 3")
    e(f"s_branch L_spin_{tag}")
    lab(f"L_free_{tag}")

def item(kind, win=3):
    srd = SRD_K if kind == "K" else SRD_V
    row = s_rowK if kind == "K" else s_rowV
    m = s_mK if kind == "K" else s_mV
    pad = KPAD if kind == "K" else VPAD
    blk = KBLK if kind == "K" else VBLK
    ring = KRING if kind == "K" else VRING
    vo = VL + 16 if kind == "K" else VL + 24
    e(f"s_mov_b32 m0, s{m}")
    e(f"s_add_u32 s{s_off}, s{m}, {4*pad}")
    for u in range(8):
        if u == 4:
            e(f"s_mov_b32 m0, s{s_off}")
            e("s_nop 0")
        e(f"buffer_load_dwordx4 v{vo+u}, {sr(srd,4)}, s{row} offen offset:{(u&3)*pad} lds")
    e(f"s_add_u32 s{row}, s{row}, {32*ROWB}")
    e(f"s_cmp_eq_u32 s{row}, s{s_rowEnd}")
    e(f"s_cselect_b32 s{row}, s{s_rowBeg}, s{row}")
    e(f"s_cselect_b32 s{srd+2}, s{s_limB}, s{srd+2}")
    e(f"s_add_u32 s{m}, s{m}, {blk}")
    e(f"s_cmp_eq_u32 s{m}, {ring+NSLOT*blk}")
    e(f"s_cselect_b32 s{m}, {ring}, s{m}")
    if DIAG >= 2: stamp()
    if win == 3:
        e("s_waitcnt vmcnt(24)")
        post_from(s_p0)
        e(f"s_mov_b32 s{s_p0}, s{s_p1}")
        e(f"s_mov_b32 s{s_p1}, s{s_p2}")
        e(f"s_mov_b32 s{s_p2}, s{s_pv}")

def post_const(v):
    e(f"s_mov_b32 s{s_posted}, {v}")
    e(f"v_mov_b32 v{VL+8}, {v}")
    e(f"ds_write_b32 v{v_ctl}, v{VL+8}")

item("K", 0); item("K", 0)
ctl_init()
item("K", 0)
e("s_waitcnt vmcnt(8)"); post_const(2)
item("V", 0)
e("s_waitcnt vmcnt(8)"); post_const(3)
q_dma("l")
kbase_calc()
item("K", 0)
e("s_waitcnt vmcnt(8)"); post_const(4)
e(f"s_cmp_lt_u32 s{s_q0}, s{s_qend}")
e("s_cbranch_scc0 L_ld_noq")
q_fetch(8)
e("s_branch L_ld_q")
lab("L_ld_noq")
e(f"v_mov_b32 v{v_prog}, 0x7fffffff")
e(f"ds_write_b32 v{v_pa}, v{v_prog}")
lab("L_ld_q")
e(f"s_mov_b32 s{s_n}, 4")
e(f"s_mov_b32 s{s_pv}, 4")
lab("L_ld_loop")
e(f"s_sub_i32 s{s_t3}, s{s_n}, 8")
e(f"s_cmp_lt_u32 s{s_n}, 11")
e(f"s_cselect_b32 s{s_t3}, 1, s{s_t3}")
wait_free(s_t3, "V")
e(f"s_add_u32 s{s_pv}, s{s_n}, 1")
item("V")
e(f"s_cmp_ge_u32 s{s_n}, s{s_NB}")
e("s_cbranch_scc1 L_ld_noK")
e(f"s_sub_i32 s{s_t3}, s{s_n}, 7")
e(f"s_max_i32 s{s_t3}, s{s_t3}, 1")
e(f"s_cmp_eq_u32 s{s_n}, 8")
e(f"s_cselect_b32 s{s_t3}, 2, s{s_t3}")
wait_free(s_t3, "K")
item("K")
lab("L_ld_noK")
e(f"s_add_u32 s{s_n}, s{s_n}, 1")
e(f"s_add_u32 s{s_t}, s{s_NB}, 3")
e(f"s_cmp_lt_u32 s{s_n}, s{s_t}")
e("s_cbranch_scc1 L_ld_loop")
for w, p in ((16, s_p0), (8, s_p1), (0, s_p2)):
    e(f"s_waitcnt vmcnt({w})")
    post_from(p)
e("s_branch L_compute")

for b in ool:
    out.extend(b)
out.append('.section .rodata,"a"')
out.append(".p2align 6")
out.append(f".amdhsa_kernel {NAME}_kernel")
out.append(f"  .amdhsa_next_free_vgpr {NVGPR}")
out.append("  .amdhsa_next_free_sgpr 96")
out.append(f"  .amdhsa_accum_offset {NVGPR}")
out.append("  .amdhsa_group_segment_fixed_size 0")
out.append("  .amdhsa_kernarg_size 56")
out.append("  .amdhsa_user_sgpr_count 2")
out.append("  .amdhsa_user_sgpr_kernarg_segment_ptr 1")
out.append("  .amdhsa_system_sgpr_workgroup_id_x 1")
out.append(".end_amdhsa_kernel")

dst = sys.argv[1] if len(sys.argv) > 1 else f"cdna_kernels/{NAME}.s"
open(dst, "w").write("\n".join(out) + "\n")
print("wrote", dst, len(out), "lines")
```

```python
import sys, math, os, struct

NAME = "standalone__ragged_sequences_packed_sequences__ragged"
T, H, D = 2266, 16, 128
ROWB = 4096
KPAD, VPAD = 1040, 1088
KBLK, VBLK = 8 * KPAD, 8 * VPAD
NSLOT = 8
KRING = 0
VRING = NSLOT * KBLK
SCR = VRING + NSLOT * VBLK
SROW = 80
SCRW = 32 * SROW
CTL = SCR + 8 * SCRW
LDS_BYTES = CTL + 128
CSCALE = (D ** -0.5) * math.log2(math.e)
SUMTHR = 1024.0
DIAG = int(os.environ.get("DIAG", "0"))
XP = os.environ.get("XP", "")

def f2u(x):
    return struct.unpack("<I", struct.pack("<f", x))[0]

jobs = []
for j in range(4):
    jobs.append((964, 1456, 16, 4 * j, 964 + 128 * j, min(964 + 128 * (j + 1), 1456), 0))
for qo, qe, s0 in zip((0, 128, 256, 352), (128, 256, 352, 448), (0, 4, 7, 11)):
    jobs.append((516, 964, 14, s0, 516 + qo, 516 + qe, 0))
for qo, qe, s0 in zip((0, 128, 224, 320), (128, 224, 320, 400), (0, 3, 7, 10)):
    jobs.append((0, 400, 13, s0, qo, qe, 0))
jobs.append((1456, 1702, 8, 0, 1456, 1702, 1))
jobs.append((2021, 2266, 8, 0, 2021, 2266, 1))
jobs.append((1702, 1900, 7, 0, 1702, 1900, 1))
jobs.append((400, 516, 8, 0, 400, 516, 2))
DUAL_B = (1900, 2021)
if "norot" in XP:
    jobs = [(a, b, c, 0, e_, f, g) for (a, b, c, d, e_, f, g) in jobs]
jobs = [jobs[i] for i in (12, 13, 14, 0, 1, 2, 3, 4, 5, 8, 6, 7, 9, 10, 11, 15)]
assert len(jobs) == 16

out = []
def e(s=""):
    out.append("    " + s if s and not s.endswith(":") else s)
def lab(s):
    out.append(s + ":")

S_Q, S_K, S_V, S_O = 4, 6, 8, 12
SRD_Q, SRD_K, SRD_V, SRD_O = 16, 20, 24, 28
s_w0, s_w1 = 32, 33
s_abase, s_aend, s_NB, s_sig0, s_mode = 34, 35, 36, 37, 38
s_wave, s_head256, s_q0, s_qend = 39, 40, 41, 42
s_t, s_t2, s_t3, s_job = 43, 44, 45, 46
s_nu, s_it, s_maskit, s_kv, s_need, s_land = 47, 48, 49, 50, 51, 52
s_kp, s_vp, s_j0 = 53, 54, 55
s_n, s_rowK, s_rowV, s_mK, s_mV, s_posted, s_free = 56, 57, 58, 59, 60, 61, 62
s_p0, s_p1, s_p2, s_p3 = 63, 64, 65, 66
s_rowEnd, s_rowBeg, s_off, s_limA, s_limB, s_pv = 67, 68, 69, 70, 71, 72
s_qs = 73
s_ti = 74

v_lane, v_h4, v_kbase, v_vbase, v_ka, v_va = 1, 2, 3, 4, 5, 6
v_l, v_sum, v_negm, v_ninf, v_ctl, v_prog, v_flag, v_pa = 7, 8, 9, 10, 11, 12, 13, 14
v_dk, v_dv = 5, 6
VT = 232
VQ, VO = 16, 48
VS = [112, 128]
VP = [144, 152]
VC0 = 160
VKF, VVF = 176, 208
VT = 240
VE_ = 252
NVGPR = 256
VL = 176
VSTAMP = 15

def vr(b, n): return f"v[{b}:{b+n-1}]"
def sr(b, n): return f"s[{b}:{b+n-1}]"

def stamp(real=False):
    if not DIAG: return
    op = "s_memrealtime" if real else "s_memtime"
    e(f"{op} s[82:83]")
    e("s_waitcnt lgkmcnt(0)")
    e("s_mov_b32 m0, s84")
    e(f"v_writelane_b32 v{VSTAMP}, s82, m0")
    e("s_add_u32 s84, s84, 1")
def dump_stamps():
    if not DIAG: return
    e("s_load_dwordx2 s[82:83], s[0:1], 48")
    e("s_waitcnt lgkmcnt(0)")
    e(f"s_lshl_b32 s{s_t}, s2, 3")
    e(f"s_add_u32 s{s_t}, s{s_t}, s{s_wave}")
    e(f"s_lshl_b32 s{s_t}, s{s_t}, 8")
    e(f"s_add_u32 s82, s82, s{s_t}")
    e("s_addc_u32 s83, s83, 0")
    e(f"v_lshlrev_b32 v0, 2, v{v_lane}")
    e(f"global_store_dword v0, v{VSTAMP}, s[82:83]")

class Lgkm:
    def __init__(self):
        self.q = []
    def issue(self, name):
        self.q.append(name)
        assert len(self.q) <= 15, f"too many LDS ops outstanding {self.q}"
    def need(self, name):
        if name in self.q:
            i = self.q.index(name)
            n = len(self.q) - i - 1
            e(f"s_waitcnt lgkmcnt({n})")
            self.q = self.q[i + 1:]
    def drain(self):
        e("s_waitcnt lgkmcnt(0)")
        self.q = []
lg = Lgkm()

ool = []

def k_read(s, koff):
    e(f"ds_read_b128 {vr(VKF+4*s,4)}, v{v_ka} offset:{koff+16*s}")
    lg.issue(f"K{s}")
def v_read(f, jj, voff):
    dt, t = f & 3, f >> 2
    e(f"ds_read_b64_tr_b16 {vr(VVF+4*f+2*jj,2)}, v{v_va} offset:{voff+(2*t+jj)*256+64*dt}")
    lg.issue(f"V{f}{jj}")
def qk_mfma(s, dst, c0):
    c = c0 if s == 0 else vr(dst, 16)
    e(f"v_mfma_f32_32x32x16_bf16 {vr(dst,16)}, {vr(VKF+4*s,4)}, {vr(VQ+4*s,4)}, {c}")
def pv_mfma(f, P):
    dt, t = f & 3, f >> 2
    e(f"v_mfma_f32_32x32x16_bf16 {vr(VO+16*dt,16)}, {vr(VVF+4*f,4)}, {vr(P+4*t,4)}, {vr(VO+16*dt,16)}")

def max_chain(S):
    t = VT
    return [
        f"v_max3_f32 v{t}, v{S+0}, v{S+1}, v{S+2}",
        f"v_max3_f32 v{t+1}, v{S+3}, v{S+4}, v{S+5}",
        f"v_max3_f32 v{t+2}, v{S+6}, v{S+7}, v{S+8}",
        f"v_max3_f32 v{t+3}, v{S+9}, v{S+10}, v{S+11}",
        f"v_max3_f32 v{t+4}, v{S+12}, v{S+13}, v{S+14}",
        f"v_max3_f32 v{t}, v{t}, v{t+1}, v{S+15}",
        f"v_max3_f32 v{t+2}, v{t+2}, v{t+3}, v{t+4}",
        f"v_max_f32 v{t}, v{t}, v{t+2}",
        f"v_mov_b32 v{t+1}, v{t}",
        "s_nop 1",
        f"v_permlane32_swap_b32 v{t}, v{t+1}",
        f"v_max_f32 v{t}, v{t}, v{t+1}",
    ]

def mask_code(S):
    b = [f"    v_sub_u32 v{VT}, s{s_kv}, v{v_h4}"]
    for r0 in range(0, 16, 4):
        for r in range(r0, r0 + 4):
            c = (r & 3) + 8 * (r >> 2)
            b.append(f"    v_cmp_lt_i32 s[{86+2*(r&3)}:{87+2*(r&3)}], {c}, v{VT}")
        for r in range(r0, r0 + 4):
            b.append(f"    v_cndmask_b32 v{S+r}, v{v_ninf}, v{S+r}, s[{86+2*(r&3)}:{87+2*(r&3)}]")
    return b

def plain_exp(S, P):
    b = []
    for k in range(0, 16, 2):
        b.append(f"    v_exp_f32 v{VE_}, v{S+k}")
        b.append(f"    v_exp_f32 v{VE_+1}, v{S+k+1}")
        b.append("    s_nop 0")
        if k == 0:
            b.append(f"    v_add_f32 v{v_sum}, v{VE_}, v{VE_+1}")
        else:
            b.append(f"    v_add_f32 v{v_sum}, v{v_sum}, v{VE_}")
            b.append(f"    v_add_f32 v{v_sum}, v{v_sum}, v{VE_+1}")
        b.append(f"    v_cvt_pk_bf16_f32 v{P+k//2}, v{VE_}, v{VE_+1}")
    return b

def adv(reg, step, end, vdst, vbase):
    return [f"s_add_u32 s{reg}, s{reg}, {step}",
            f"s_cmp_eq_u32 s{reg}, {end}",
            f"s_cselect_b32 s{reg}, 0, s{reg}",
            f"v_add_u32 v{vdst}, s{reg}, v{vbase}"]

COST = {"v_exp": 8, "v_cvt": 5}
def cost(x):
    for k, v in COST.items():
        if x.startswith(k): return v
    return 4

def body(par, has_pv, tag, budget=24):
    Sc, Sn = VS[par], VS[1 - par]
    Pc, Pp = VP[par], VP[1 - par]
    koff = 0 if par == 0 else KBLK
    voff = VBLK if par == 0 else 0
    if DIAG >= 2:
        sv = list(lg.q); stamp(); lg.q = sv
    E = lambda k: VE_ + (k & 3)
    seq = []
    for k in range(16):
        seq.append(f"v_exp_f32 v{E(k)}, v{Sc+k}")
        if k == 2:
            seq.append(f"v_add_f32 v{v_sum}, v{E(0)}, v{E(1)}")
        elif k >= 3:
            seq.append(f"v_add_f32 v{v_sum}, v{v_sum}, v{E(k-1)}")
        if k >= 2 and k % 2 == 0:
            seq.append(f"v_cvt_pk_bf16_f32 v{Pc+(k-2)//2}, v{E(k-2)}, v{E(k-1)}")
    seq.append(f"v_add_u32 v{v_prog}, 1, v{v_prog}")
    seq.append(f"v_add_f32 v{v_sum}, v{v_sum}, v{E(15)}")
    seq.append(f"v_cvt_pk_bf16_f32 v{Pc+7}, v{E(14)}, v{E(15)}")
    if has_pv:
        seq.append(f"v_cmp_lt_f32 vcc, {f2u(SUMTHR):#x}, v{v_sum}")
    else:
        seq.append(f"v_cmp_lt_f32 vcc, {f2u(SUMTHR):#x}, v{v_sum}")
        seq.append(f"v_cmp_gt_f32 s[86:87], {f2u(1.0/SUMTHR):#x}, v{v_sum}" if False else f"v_mov_b32 v{VT}, {f2u(1.0/SUMTHR):#x}")
        seq.append(f"v_cmp_gt_f32 s[86:87], v{VT}, v{v_sum}")
    kgap = {10: [0, 1], 11: [2, 3], 12: [4], 13: [5], 14: [6], 15: [7]}
    si = 0
    cum = 0
    BUD = float(os.environ.get("BUD", "26.5"))
    for g in range(16):
        used = cum
        if g < 8:
            if g == 0: lg.need("K3"); used += 4
            if g == 4: lg.need("K7"); used += 4
            qk_mfma(g, Sn, vr(VC0, 16))
        else:
            f = g - 8
            if has_pv:
                if f == 0: lg.need("V31"); used += 4
                if f == 4: lg.need("V71"); used += 4
                pv_mfma(f, Pp)
            else:
                if f == 0: lg.need("F")
        if g == 0:
            e(f"ds_read_b32 v{v_flag}, v{v_ctl}"); lg.issue("F"); used += 4
        if has_pv and 2 <= g <= 9:
            v_read(g - 2, 0, voff); v_read(g - 2, 1, voff); used += 8
        for sk in kgap.get(g, []):
            k_read(sk, koff); used += 4
        if g == 15:
            e(f"ds_write_b32 v{v_pa}, v{v_prog}"); lg.issue("W"); used += 4
        tail = []
        if g == 8:
            e(f"v_readfirstlane_b32 s{s_land}, v{v_flag}"); used += 4
        if g == 9:
            tail += [f"s_cmp_ge_u32 s{s_land}, s{s_it}", f"s_cbranch_scc0 L_poll_{tag}", f"L_polldone_{tag}:"]; used += 10
            ool.append([f"L_poll_{tag}:",
                        f"    ds_read_b32 v{v_flag}, v{v_ctl}",
                        "    s_waitcnt lgkmcnt(0)",
                        f"    v_readfirstlane_b32 s{s_land}, v{v_flag}",
                        f"    s_cmp_ge_u32 s{s_land}, s{s_it}",
                        f"    s_cbranch_scc1 L_polldone_{tag}",
                        "    s_sleep 1",
                        f"    s_branch L_poll_{tag}"])
        if g == 10 and par == 0:
            tail += adv(s_vp, 2 * VBLK, NSLOT * VBLK, v_va, v_vbase)[:3]; used += 12
        if g == 11 and par == 0:
            tail += adv(s_vp, 2 * VBLK, NSLOT * VBLK, v_va, v_vbase)[3:]; used += 4
        if g == 12:
            tail += [f"s_add_u32 s{s_it}, s{s_it}, 1"]; used += 4
        if g == 13 and par == 1:
            tail += adv(s_kp, 2 * KBLK, NSLOT * KBLK, v_ka, v_kbase)[:3]; used += 12
        remaining_gaps = 14 - g
        while si < len(seq) and (used + cost(seq[si]) * 0.5 <= BUD * (g + 1) or g == 14):
            e(seq[si]); used += cost(seq[si]); si += 1
        cum = used
        for x in tail:
            if x.endswith(":"): out.append(x)
            else: e(x)
    assert si == len(seq)
    if par == 1:
        e(adv(s_kp, 2 * KBLK, NSLOT * KBLK, v_ka, v_kbase)[3])
    if not has_pv:
        e("s_or_b64 vcc, vcc, s[86:87]")
    e(f"s_cbranch_vccnz L_ovf_{tag}")
    lab(f"L_ovfdone_{tag}")
    e(f"v_add_f32 v{v_l}, v{v_l}, v{v_sum}")
    r = [f"L_ovf_{tag}:", "    s_nop 7", "    s_nop 7"]
    r += ["    " + x for x in max_chain(Sc)]
    if has_pv:
        r += [f"    v_max_f32 v{VT}, 0, v{VT}",
              f"    v_sub_f32 v{VT+1}, 0, v{VT}",
              f"    v_exp_f32 v{VT+1}, v{VT+1}"]
    r += [f"    v_sub_f32 v{v_negm}, v{v_negm}, v{VT}"]
    for k in range(16):
        r.append(f"    v_sub_f32 v{Sc+k}, v{Sc+k}, v{VT}")
        r.append(f"    v_sub_f32 v{Sn+k}, v{Sn+k}, v{VT}")
        r.append(f"    v_mov_b32 v{VC0+k}, v{v_negm}")
    if has_pv:
        for k in range(64):
            r.append(f"    v_mul_f32 v{VO+k}, v{VT+1}, v{VO+k}")
        r.append(f"    v_mul_f32 v{v_l}, v{VT+1}, v{v_l}")
    r += plain_exp(Sc, Pc)
    r.append(f"    s_branch L_ovfdone_{tag}")
    ool.append(r)

def event(par_next, tag, fin, cont):
    ool.append([f"L_ev_{tag}:",
                f"    s_cmp_eq_u32 s{s_it}, s{s_nu}",
                f"    s_cbranch_scc1 {fin}",
                f"    s_mov_b32 s{s_maskit}, s{s_nu}"] + mask_code(VS[par_next]) + [f"    s_branch {cont}"])

def final_pv(par_last, tag):
    P = VP[par_last]
    voff = VBLK if (1 - par_last) == 0 else 0
    lg.drain()
    for f in range(7):
        v_read(f, 0, voff); v_read(f, 1, voff)
    for f in range(8):
        lg.need(f"V{f}1")
        pv_mfma(f, P)
        if f == 0:
            v_read(7, 0, voff); v_read(7, 1, voff)

out.append(f"; @launch grid=(256,1,1) block=(512,1,1) lds={LDS_BYTES}")
out.append('.amdgcn_target "amdgcn-amd-amdhsa--gfx950"')
out.append(".text")
out.append(f".globl {NAME}_kernel")
out.append(".p2align 8")
out.append(f".type {NAME}_kernel,@function")
lab(f"{NAME}_kernel")
e("s_cmp_ge_u32 s2, 256")
e("s_cbranch_scc1 L_end")
if DIAG:
    e("s_mov_b32 s84, 0"); e(f"v_mov_b32 v{VSTAMP}, 0")
stamp(True); stamp()
if "dbg" in XP:
    e("s_memrealtime s[76:77]")
    e("s_memtime s[78:79]")
e(f"v_lshrrev_b32 v{VT}, 6, v0")
e(f"v_mov_b32 v{v_ctl}, {CTL}")
e(f"v_mov_b32 v{v_flag}, 0")
e(f"v_add_u32 v{VT+1}, 7, v{VT}")
e(f"v_and_b32 v{VT+1}, 7, v{VT+1}")
e(f"v_lshl_add_u32 v{v_pa}, v{VT+1}, 2, v{v_ctl}")
e(f"ds_write_b32 v{v_ctl}, v{v_flag}")
e(f"ds_write_b32 v{v_pa}, v{v_flag} offset:16")
e(f"v_add_u32 v{v_pa}, 16, v{v_pa}")
e(f"v_and_b32 v{v_lane}, 63, v0")
e(f"v_readfirstlane_b32 s{s_wave}, v{VT}")
e("s_waitcnt lgkmcnt(0)")
e("s_load_dwordx8 s[4:11], s[0:1], 0")
e("s_load_dwordx2 s[12:13], s[0:1], 32")
e("s_barrier")
e(f"s_and_b32 s{s_t}, s2, 7")
e(f"s_lshl_b32 s{s_t}, s{s_t}, 1")
e(f"s_bfe_u32 s{s_t2}, s2, 0x10003")
e(f"s_add_u32 s{s_t}, s{s_t}, s{s_t2}")
e(f"s_lshl_b32 s{s_head256}, s{s_t}, 8")
e(f"s_lshr_b32 s{s_job}, s2, 4")
def pack(j):
    a, b, nb, s0, q, qe, mode = jobs[j]
    w0 = a | (b << 12) | (s0 << 24) | (mode << 28)
    w1 = q | (qe << 12) | (nb << 24)
    return w0, w1
w0, w1 = pack(0)
e(f"s_mov_b32 s{s_w0}, {w0:#x}")
e(f"s_mov_b32 s{s_w1}, {w1:#x}")
for j in range(1, 16):
    w0, w1 = pack(j)
    e(f"s_cmp_eq_u32 s{s_job}, {j}")
    e(f"s_cselect_b32 s{s_w0}, {w0:#x}, s{s_w0}")
    e(f"s_cselect_b32 s{s_w1}, {w1:#x}, s{s_w1}")
e(f"s_and_b32 s{s_abase}, s{s_w0}, 0xfff")
e(f"s_bfe_u32 s{s_aend}, s{s_w0}, 0xc000c")
e(f"s_bfe_u32 s{s_sig0}, s{s_w0}, 0x40018")
e(f"s_lshr_b32 s{s_mode}, s{s_w0}, 28")
e(f"s_and_b32 s{s_q0}, s{s_w1}, 0xfff")
e(f"s_bfe_u32 s{s_qend}, s{s_w1}, 0xc000c")
e(f"s_lshr_b32 s{s_NB}, s{s_w1}, 24")
e(f"s_add_u32 s{s_ti}, s{s_wave}, 7")
e(f"s_and_b32 s{s_ti}, s{s_ti}, 7")
e(f"s_lshl_b32 s{s_t}, s{s_ti}, 5")
e(f"s_add_u32 s{s_q0}, s{s_q0}, s{s_t}")
e(f"s_lshr_b32 s{s_t2}, s{s_ti}, 2")
e(f"s_lshl_b32 s{s_t3}, s{s_t2}, 2")
e(f"s_add_u32 s{s_t3}, s{s_t3}, s{s_mode}")
e(f"s_mov_b32 s{s_nu}, s{s_NB}")
e(f"s_mov_b32 s{s_j0}, 0")
e(f"s_sub_u32 s{s_kv}, s{s_aend}, s{s_abase}")
e(f"s_cmp_eq_u32 s{s_mode}, 2")
e(f"s_cselect_b32 s{s_nu}, 4, s{s_nu}")
e(f"s_add_u32 s{s_t}, s{s_t}, {DUAL_B[0]-128}")
e(f"s_cmp_eq_u32 s{s_t3}, 6")
e(f"s_cselect_b32 s{s_q0}, s{s_t}, s{s_q0}")
e(f"s_cselect_b32 s{s_qend}, {DUAL_B[1]}, s{s_qend}")
e(f"s_cselect_b32 s{s_j0}, 4, s{s_j0}")
e(f"s_cselect_b32 s{s_kv}, {DUAL_B[1]-DUAL_B[0]}, s{s_kv}")
e(f"s_cmp_eq_u32 s{s_t3}, 4")
e(f"s_cselect_b32 s{s_qend}, 0, s{s_qend}")
e(f"v_and_b32 v{VT+4}, 31, v{v_lane}")
e(f"v_lshrrev_b32 v{VT+5}, 5, v{v_lane}")
e(f"v_lshrrev_b32 v{VT}, 4, v{v_lane}")
e(f"v_and_b32 v{VT+1}, 15, v{v_lane}")
e(f"v_lshlrev_b32 v{VT+2}, 15, v{VT}")
e(f"v_lshl_add_u32 v{v_dv}, v{VT+1}, 4, v{VT+2}")
e(f"v_and_b32 v{VT+3}, 1, v{VT}")
e(f"v_lshlrev_b32 v{VT+3}, 7, v{VT+3}")
e(f"v_xor_b32 v{v_dk}, v{v_dv}, v{VT+3}")
e(f"s_mul_i32 s{s_qs}, s{s_ti}, {KBLK}")
e(f"s_add_u32 s{s_qs}, s{s_qs}, {4*KBLK}")
e(f"s_mul_i32 s{s_t}, s{s_wave}, {VBLK}")
e(f"s_add_u32 s{s_t}, s{s_t}, {VRING}")
e(f"s_cmp_ge_u32 s{s_ti}, 4")
e(f"s_cselect_b32 s{s_qs}, s{s_t}, s{s_qs}")
e(f"s_cmp_eq_u32 s{s_wave}, 0")
e(f"s_cselect_b32 s{s_qs}, {VRING+4*VBLK}, s{s_qs}")
def srd_rows(dst, ptr, rowreg, endreg):
    e(f"s_lshl_b32 s{s_t}, s{rowreg}, 12")
    e(f"s_add_u32 s{s_t}, s{s_t}, s{s_head256}")
    e(f"s_add_u32 s{dst}, s{ptr}, s{s_t}")
    e(f"s_addc_u32 s{dst+1}, s{ptr+1}, 0")
    e(f"s_sub_i32 s{s_t}, s{endreg}, s{rowreg}")
    e(f"s_lshl_b32 s{s_t}, s{s_t}, 12")
    e(f"s_sub_i32 s{s_t}, s{s_t}, {4096-256}")
    e(f"s_max_i32 s{dst+2}, s{s_t}, 0")
    e(f"s_mov_b32 s{dst+3}, 0x00020000")
e(f"s_lshl_b32 s{s_t2}, s{s_q0}, 12")
e(f"s_add_u32 s{s_t2}, s{s_t2}, s{s_head256}")
e(f"s_sub_i32 s{s_t}, s{s_qend}, s{s_q0}")
e(f"s_lshl_b32 s{s_t}, s{s_t}, 12")
e(f"s_sub_i32 s{s_t}, s{s_t}, {4096-256}")
e(f"s_max_i32 s{SRD_Q+2}, s{s_t}, 0")
e(f"s_mov_b32 s{SRD_Q+3}, 0x00020000")
e(f"s_mov_b32 s{SRD_O+2}, s{SRD_Q+2}")
e(f"s_mov_b32 s{SRD_O+3}, 0x00020000")
e("s_waitcnt lgkmcnt(0)")
stamp()
e(f"s_add_u32 s{SRD_Q}, s{S_Q}, s{s_t2}")
e(f"s_addc_u32 s{SRD_Q+1}, s{S_Q+1}, 0")
def q_dma(tag):
    e(f"s_cmp_lt_u32 s{s_q0}, s{s_qend}")
    e(f"s_cbranch_scc0 L_noq{tag}")
    for u in range(8):
        e(f"s_add_u32 m0, s{s_qs}, {u*KPAD}")
        e(f"s_mov_b32 s{s_t}, {u*ROWB}")
        e(f"buffer_load_dwordx4 v{v_dk}, {sr(SRD_Q,4)}, s{s_t} offen lds")
    lab(f"L_noq{tag}")
e(f"s_add_u32 s{SRD_O}, s{S_O}, s{s_t2}")
e(f"s_addc_u32 s{SRD_O+1}, s{S_O+1}, 0")
e(f"s_cmp_eq_u32 s{s_wave}, 0")
e("s_cbranch_scc1 L_loader")
q_dma("c")
def kbase_calc():
    e(f"v_and_b32 v{VT+7}, 7, v{VT+4}")
    e(f"v_mul_u32_u24 v{v_kbase}, {KPAD}, v{VT+7}")
    e(f"v_lshrrev_b32 v{VT+7}, 3, v{VT+4}")
    e(f"v_lshl_add_u32 v{v_kbase}, v{VT+7}, 8, v{v_kbase}")
    e(f"v_and_b32 v{VT+7}, 1, v{VT+7}")
    e(f"v_xor_b32 v{VT+7}, v{VT+7}, v{VT+5}")
    e(f"v_lshl_add_u32 v{v_kbase}, v{VT+7}, 7, v{v_kbase}")
    e(f"v_add_u32 v{VT+6}, s{s_qs}, v{v_kbase}")
kbase_calc()
def q_fetch(wait):
    e(f"s_waitcnt vmcnt({wait})")
    for k in range(8):
        e(f"ds_read_b128 {vr(VQ+4*k,4)}, v{VT+6} offset:{16*k}")
    e(f"v_mov_b32 v{v_prog}, 1")
    e("s_waitcnt lgkmcnt(0)")
    e(f"ds_write_b32 v{v_pa}, v{v_prog}")
def ctl_init():
    pass
lab("L_compute")
e(f"s_cmp_lt_u32 s{s_q0}, s{s_qend}")
e("s_cbranch_scc0 L_idle")
if "prio" in XP: e("s_setprio 2")
e(f"v_lshlrev_b32 v{v_h4}, 2, v{VT+5}")
e(f"v_bfe_u32 v{VT+7}, v{v_lane}, 2, 2")
e(f"v_add_u32 v{VT+7}, v{VT+7}, v{v_h4}")
e(f"v_mul_u32_u24 v{v_vbase}, {VPAD}, v{VT+7}")
e(f"v_and_b32 v{VT+7}, 1, v{v_lane}")
e(f"v_lshl_add_u32 v{v_vbase}, v{VT+7}, 5, v{v_vbase}")
e(f"v_bfe_u32 v{VT+7}, v{v_lane}, 4, 1")
e(f"v_lshl_add_u32 v{v_vbase}, v{VT+7}, 4, v{v_vbase}")
e(f"v_bfe_u32 v{VT+7}, v{v_lane}, 1, 1")
e(f"v_lshl_add_u32 v{v_vbase}, v{VT+7}, 3, v{v_vbase}")
e(f"v_add_u32 v{v_vbase}, {VRING}, v{v_vbase}")
e(f"v_mov_b32 v{v_ninf}, 0xff800000")
e(f"v_mov_b32 v{v_l}, 0")
for k in range(4):
    e(f"v_mov_b32 v{VE_+k}, 0")
e(f"v_mov_b32 v{v_negm}, 0")
e("s_nop 0")
for dst in (VO, VO+16, VO+32, VO+48, VC0):
    e(f"v_mfma_f32_32x32x16_bf16 {vr(dst,16)}, {vr(VE_,4)}, {vr(VE_,4)}, 0")
e(f"s_sub_u32 s{s_t}, s{s_nu}, 1")
e(f"s_sub_u32 s{s_maskit}, s{s_t}, s{s_sig0}")
e(f"s_lshl_b32 s{s_t}, s{s_t}, 5")
e(f"s_sub_u32 s{s_kv}, s{s_kv}, s{s_t}")
e(f"s_cmp_ge_u32 s{s_kv}, 32")
e(f"s_cselect_b32 s{s_maskit}, s{s_nu}, s{s_maskit}")
e(f"s_add_u32 s{s_it}, s{s_j0}, 4")
e(f"s_add_u32 s{s_maskit}, s{s_maskit}, s{s_it}")
e(f"s_add_u32 s{s_nu}, s{s_nu}, s{s_it}")
e(f"s_mul_i32 s{s_kp}, s{s_j0}, {KBLK}")
e(f"s_mul_i32 s{s_vp}, s{s_j0}, {VBLK}")
e(f"v_add_u32 v{v_ka}, s{s_kp}, v{v_kbase}")
e(f"v_add_u32 v{v_va}, s{s_vp}, v{v_vbase}")
e(f"s_add_u32 s{s_need}, s{s_j0}, 3")
e(f"s_cmp_eq_u32 s{s_j0}, 0")
e(f"s_cselect_b32 s{s_t3}, 2, s{s_need}")
stamp()
e(f"s_cmp_eq_u32 s{s_wave}, 0")
e("s_cbranch_scc1 L_qdone")
q_fetch(0)
lab("L_qdone")
e(f"s_mov_b32 s86, {f2u(CSCALE):#x}")
e(f"s_mov_b32 s87, {f2u(CSCALE):#x}")
e(f"s_mov_b32 s{s_t2}, 0xffff0000")
for s in range(8):
    for k in range(4):
        q = VQ + 4 * s + k
        e(f"v_lshlrev_b32 v{VT+2*k}, 16, v{q}")
        e(f"v_and_b32 v{VT+2*k+1}, s{s_t2}, v{q}")
    for k in range(8):
        e(f"v_mul_f32 v{VT+k}, s86, v{VT+k}")
    for k in range(4):
        q = VQ + 4 * s + k
        e(f"v_cvt_pk_bf16_f32 v{q}, v{VT+2*k}, v{VT+2*k+1}")
stamp()
lab("L_poll_pre")
e(f"ds_read_b32 v{v_flag}, v{v_ctl}")
e("s_waitcnt lgkmcnt(0)")
e(f"v_readfirstlane_b32 s{s_land}, v{v_flag}")
e(f"s_cmp_ge_u32 s{s_land}, s{s_t3}")
e("s_cbranch_scc1 L_poll_pre_done")
e("s_sleep 1")
e("s_branch L_poll_pre")
lab("L_poll_pre_done")
stamp()
lg.q = []
for s in range(8):
    k_read(s, 0)
def k_read2(s):
    e(f"ds_read_b128 {vr(VKF+4*s,4)}, v{v_ka} offset:{KBLK+16*s}")
    lg.issue(f"N{s}")
for s in range(8):
    lg.need(f"K{s}")
    qk_mfma(s, VS[0], "0")
    if s >= 1: k_read2(s - 1)
k_read2(7)
for x in adv(s_kp, 2 * KBLK, NSLOT * KBLK, v_ka, v_kbase): e(x)
e("s_nop 7")
e(f"s_cmp_eq_u32 s{s_it}, s{s_maskit}")
e("s_cbranch_scc1 L_mask_pre")
lab("L_maskdone_pre")
ool.append(["L_mask_pre:", f"    s_mov_b32 s{s_maskit}, s{s_nu}"] + mask_code(VS[0]) + ["    s_branch L_maskdone_pre"])
lg.drain()
stamp()
body(0, False, "i0")
lg.drain()
e(f"s_mul_i32 s{s_vp}, s{s_j0}, {VBLK}")
e(f"v_add_u32 v{v_va}, s{s_vp}, v{v_vbase}")
stamp()
steady = [f"K{s}" for s in range(8)] + ["W"]
e(f"s_cmp_eq_u32 s{s_it}, s{s_maskit}")
e("s_cbranch_scc1 L_ev_even")
lab("L_loop")
lg.q = list(steady)
body(1, True, "odd")
assert lg.q == steady, lg.q
e(f"s_cmp_eq_u32 s{s_it}, s{s_maskit}")
e("s_cbranch_scc1 L_ev_odd")
lab("L_loop_mid")
body(0, True, "even")
assert lg.q == steady, lg.q
e(f"s_cmp_lg_u32 s{s_it}, s{s_maskit}")
e("s_cbranch_scc1 L_loop")
e("s_branch L_ev_even")
event(0, "odd", "L_fin_odd", "L_loop_mid")
event(1, "even", "L_fin_even", "L_loop")
lab("L_fin_even")
stamp()
lg.q = list(steady)
final_pv(0, "e")
e("s_branch L_epi")
lab("L_fin_odd")
stamp()
lg.q = list(steady)
final_pv(1, "o")
lab("L_epi")
e(f"v_mov_b32 v{VT+1}, v{v_l}")
e("s_nop 1")
e(f"v_permlane32_swap_b32 v{v_l}, v{VT+1}")
e(f"v_add_f32 v{v_l}, v{v_l}, v{VT+1}")
e(f"v_rcp_f32 v{VT+2}, v{v_l}")
va_tw, va_tr, va_st = VT + 8, VT + 9, VT + 10
e(f"s_mul_i32 s{s_t}, s{s_wave}, {SCRW}")
e(f"s_add_u32 s{s_t}, s{s_t}, {SCR}")
e(f"v_and_b32 v{VT}, 31, v{v_lane}")
e(f"v_mul_u32_u24 v{va_tw}, {SROW}, v{VT}")
e(f"v_lshl_add_u32 v{va_tw}, v{v_h4}, 3, v{va_tw}")
e(f"v_add_u32 v{va_tw}, s{s_t}, v{va_tw}")
e(f"v_lshrrev_b32 v{VT}, 2, v{v_lane}")
e(f"v_and_b32 v{VT+1}, 3, v{v_lane}")
e(f"v_mul_u32_u24 v{va_tr}, {SROW}, v{VT}")
e(f"v_lshl_add_u32 v{va_tr}, v{VT+1}, 4, v{va_tr}")
e(f"v_add_u32 v{va_tr}, s{s_t}, v{va_tr}")
e(f"v_lshlrev_b32 v{va_st}, 12, v{VT}")
e(f"v_lshl_add_u32 v{va_st}, v{VT+1}, 4, v{va_st}")
e(f"s_mov_b32 s{s_t2}, {16*ROWB}")
e("s_nop 3")
def norm(dt):
    for k in range(16):
        e(f"v_mul_f32 v{VO+16*dt+k}, v{VT+2}, v{VO+16*dt+k}")
    for k in range(8):
        e(f"v_cvt_pk_bf16_f32 v{VKF+8*dt+k}, v{VO+16*dt+2*k}, v{VO+16*dt+2*k+1}")
norm(0)
for dt in range(4):
    e(f"ds_write_b128 v{va_tw}, {vr(VKF+8*dt,4)}")
    e(f"ds_write_b128 v{va_tw}, {vr(VKF+8*dt+4,4)} offset:16")
    e("s_waitcnt lgkmcnt(0)")
    e(f"ds_read_b128 {vr(VVF+8*dt,4)}, v{va_tr}")
    e(f"ds_read_b128 {vr(VVF+8*dt+4,4)}, v{va_tr} offset:{16*SROW}")
    if dt < 3:
        norm(dt + 1)
    e("s_waitcnt lgkmcnt(0)")
    e(f"buffer_store_dwordx4 {vr(VVF+8*dt,4)}, v{va_st}, {sr(SRD_O,4)}, 0 offen offset:{64*dt} sc1")
    e(f"buffer_store_dwordx4 {vr(VVF+8*dt+4,4)}, v{va_st}, {sr(SRD_O,4)}, s{s_t2} offen offset:{64*dt} sc1")
lab("L_exit")
if "dbg" in XP:
    e("s_waitcnt vmcnt(0)")
    e("s_memrealtime s[92:93]")
    e("s_memtime s[94:95]")
    e("s_load_dwordx2 s[82:83], s[0:1], 40")
    e("s_waitcnt lgkmcnt(0)")
    e("s_and_b32 s80, s2, 31")
    e(f"s_lshl_b32 s81, s{s_wave}, 8")
    e("s_add_u32 s80, s80, s81")
    e(f"s_cmp_eq_u32 s80, {8 + 4*256}")
    e("s_cbranch_scc0 L_nodbg")
    e("s_lshr_b32 s80, s2, 5")
    e("s_lshl_b32 s80, s80, 3")
    e("v_mov_b32 v20, s80")
    e("v_mov_b32 v22, s76")
    e("v_mov_b32 v23, s92")
    e("s_mov_b64 exec, 1")
    e("global_store_dwordx2 v20, v[22:23], s[82:83]")
    lab("L_nodbg")
if DIAG:
    e("s_waitcnt vmcnt(0)")
stamp(); stamp(True)
dump_stamps()
lab("L_end")
e("s_endpgm")

lab("L_idle")
e(f"v_mov_b32 v{v_prog}, 0x7fffffff")
e(f"ds_write_b32 v{v_pa}, v{v_prog}")
e("s_branch L_exit")
lab("L_loader")
e(f"v_mov_b32 v{VL+11}, {CTL+16}")
for u in range(8):
    e(f"v_add_u32 v{VL+16+u}, {u*ROWB-(u&3)*KPAD}, v{v_dk}")
    e(f"v_add_u32 v{VL+24+u}, {u*ROWB-(u&3)*VPAD}, v{v_dv}")
e(f"s_add_u32 s{SRD_K}, s{S_K}, s{s_head256}")
e(f"s_addc_u32 s{SRD_K+1}, s{S_K+1}, 0")
e(f"s_add_u32 s{SRD_V}, s{S_V}, s{s_head256}")
e(f"s_addc_u32 s{SRD_V+1}, s{S_V+1}, 0")
e(f"s_lshl_b32 s{s_limA}, s{s_aend}, 12")
e(f"s_sub_u32 s{s_limA}, s{s_limA}, {4096-256}")
e(f"s_mov_b32 s{s_limB}, {(DUAL_B[1]-1)*4096+256}")
e(f"s_mov_b32 s{SRD_K+2}, s{s_limA}")
e(f"s_mov_b32 s{SRD_V+2}, s{s_limA}")
e(f"s_mov_b32 s{SRD_K+3}, 0x00020000")
e(f"s_mov_b32 s{SRD_V+3}, 0x00020000")
e(f"s_lshl_b32 s{s_rowBeg}, s{s_abase}, 12")
e(f"s_lshl_b32 s{s_t}, s{s_sig0}, 17")
e(f"s_add_u32 s{s_rowK}, s{s_rowBeg}, s{s_t}")
e(f"s_mov_b32 s{s_rowV}, s{s_rowK}")
e(f"s_lshl_b32 s{s_t}, s{s_NB}, 17")
e(f"s_add_u32 s{s_rowEnd}, s{s_rowBeg}, s{s_t}")
e(f"s_cmp_eq_u32 s{s_mode}, 2")
e(f"s_cselect_b32 s{s_rowEnd}, {(400+128)*4096}, s{s_rowEnd}")
e(f"s_cselect_b32 s{s_rowBeg}, {DUAL_B[0]*4096}, s{s_rowBeg}")
e(f"s_cselect_b32 s{s_limB}, s{s_limB}, s{s_limA}")
e(f"s_mov_b32 s{s_mK}, {KRING}")
e(f"s_mov_b32 s{s_mV}, {VRING}")
e(f"s_mov_b32 s{s_n}, 0")
e(f"s_mov_b32 s{s_posted}, 0")
e(f"s_mov_b32 s{s_free}, 0")
for p in (s_p0, s_p1, s_p2, s_p3):
    e(f"s_mov_b32 s{p}, 0")
e(f"s_mov_b32 s{s_pv}, 0")

def post_from(reg):
    e(f"s_max_u32 s{s_posted}, s{s_posted}, s{reg}")
    e(f"v_mov_b32 v{VL+8}, s{s_posted}")
    e(f"ds_write_b32 v{v_ctl}, v{VL+8}")

def wait_free(needreg, tag):
    fr = s_free if tag == "K" else s_p3
    e(f"s_cmp_ge_i32 s{fr}, s{needreg}")
    e(f"s_cbranch_scc1 L_free_{tag}")
    e("s_waitcnt vmcnt(0)")
    post_from(s_pv)
    lab(f"L_spin_{tag}")
    e(f"ds_read_b128 {vr(VL+4,4)}, v{VL+11}")
    e(f"ds_read_b128 {vr(VL+12,4)}, v{VL+11} offset:16")
    e("s_waitcnt lgkmcnt(0)")
    e(f"v_min3_u32 v{VL+4}, v{VL+4}, v{VL+5}, v{VL+6}")
    e(f"v_min3_u32 v{VL+12}, v{VL+12}, v{VL+13}, v{VL+14}")
    e(f"v_min_u32 v{VL+4}, v{VL+4}, v{VL+7}")
    e(f"v_min3_u32 v{VL+12}, v{VL+12}, v{VL+15}, v{VL+4}")
    e(f"v_readfirstlane_b32 s{s_free}, v{VL+4}")
    e(f"v_readfirstlane_b32 s{s_p3}, v{VL+12}")
    e(f"s_cmp_ge_i32 s{fr}, s{needreg}")
    e(f"s_cbranch_scc1 L_free_{tag}")
    e("s_sleep 3")
    e(f"s_branch L_spin_{tag}")
    lab(f"L_free_{tag}")

def item(kind, win=3):
    srd = SRD_K if kind == "K" else SRD_V
    row = s_rowK if kind == "K" else s_rowV
    m = s_mK if kind == "K" else s_mV
    pad = KPAD if kind == "K" else VPAD
    blk = KBLK if kind == "K" else VBLK
    ring = KRING if kind == "K" else VRING
    vo = VL + 16 if kind == "K" else VL + 24
    e(f"s_mov_b32 m0, s{m}")
    e(f"s_add_u32 s{s_off}, s{m}, {4*pad}")
    for u in range(8):
        if u == 4:
            e(f"s_mov_b32 m0, s{s_off}")
            e("s_nop 0")
        e(f"buffer_load_dwordx4 v{vo+u}, {sr(srd,4)}, s{row} offen offset:{(u&3)*pad} lds")
    e(f"s_add_u32 s{row}, s{row}, {32*ROWB}")
    e(f"s_cmp_eq_u32 s{row}, s{s_rowEnd}")
    e(f"s_cselect_b32 s{row}, s{s_rowBeg}, s{row}")
    e(f"s_cselect_b32 s{srd+2}, s{s_limB}, s{srd+2}")
    e(f"s_add_u32 s{m}, s{m}, {blk}")
    e(f"s_cmp_eq_u32 s{m}, {ring+NSLOT*blk}")
    e(f"s_cselect_b32 s{m}, {ring}, s{m}")
    if DIAG >= 2: stamp()
    if win == 3:
        e("s_waitcnt vmcnt(24)")
        post_from(s_p0)
        e(f"s_mov_b32 s{s_p0}, s{s_p1}")
        e(f"s_mov_b32 s{s_p1}, s{s_p2}")
        e(f"s_mov_b32 s{s_p2}, s{s_pv}")

def post_const(v):
    e(f"s_mov_b32 s{s_posted}, {v}")
    e(f"v_mov_b32 v{VL+8}, {v}")
    e(f"ds_write_b32 v{v_ctl}, v{VL+8}")

item("K", 0); item("K", 0)
ctl_init()
item("K", 0)
e("s_waitcnt vmcnt(8)"); post_const(2)
item("V", 0)
e("s_waitcnt vmcnt(8)"); post_const(3)
q_dma("l")
kbase_calc()
item("K", 0)
e("s_waitcnt vmcnt(8)"); post_const(4)
e(f"s_cmp_lt_u32 s{s_q0}, s{s_qend}")
e("s_cbranch_scc0 L_ld_noq")
q_fetch(8)
e("s_branch L_ld_q")
lab("L_ld_noq")
e(f"v_mov_b32 v{v_prog}, 0x7fffffff")
e(f"ds_write_b32 v{v_pa}, v{v_prog}")
lab("L_ld_q")
e(f"s_mov_b32 s{s_n}, 4")
e(f"s_mov_b32 s{s_pv}, 4")
lab("L_ld_loop")
e(f"s_sub_i32 s{s_t3}, s{s_n}, 8")
e(f"s_cmp_lt_u32 s{s_n}, 11")
e(f"s_cselect_b32 s{s_t3}, 1, s{s_t3}")
e(f"s_cmp_lt_u32 s{s_n}, 7")
e(f"s_cselect_b32 s{s_t3}, 0, s{s_t3}")
wait_free(s_t3, "V")
e(f"s_add_u32 s{s_pv}, s{s_n}, 1")
item("V")
e(f"s_cmp_ge_u32 s{s_n}, s{s_NB}")
e("s_cbranch_scc1 L_ld_noK")
e(f"s_sub_i32 s{s_t3}, s{s_n}, 7")
e(f"s_max_i32 s{s_t3}, s{s_t3}, 1")
e(f"s_cmp_eq_u32 s{s_n}, 8")
e(f"s_cselect_b32 s{s_t3}, 2, s{s_t3}")
wait_free(s_t3, "K")
item("K")
lab("L_ld_noK")
e(f"s_add_u32 s{s_n}, s{s_n}, 1")
e(f"s_add_u32 s{s_t}, s{s_NB}, 3")
e(f"s_cmp_lt_u32 s{s_n}, s{s_t}")
e("s_cbranch_scc1 L_ld_loop")
for w, p in ((16, s_p0), (8, s_p1), (0, s_p2)):
    e(f"s_waitcnt vmcnt({w})")
    post_from(p)
e("s_branch L_compute")

for b in ool:
    out.extend(b)
out.append('.section .rodata,"a"')
out.append(".p2align 6")
out.append(f".amdhsa_kernel {NAME}_kernel")
out.append(f"  .amdhsa_next_free_vgpr {NVGPR}")
out.append("  .amdhsa_next_free_sgpr 96")
out.append(f"  .amdhsa_accum_offset {NVGPR}")
out.append("  .amdhsa_group_segment_fixed_size 0")
out.append("  .amdhsa_kernarg_size 56")
out.append("  .amdhsa_user_sgpr_count 2")
out.append("  .amdhsa_user_sgpr_kernarg_segment_ptr 1")
out.append("  .amdhsa_system_sgpr_workgroup_id_x 1")
out.append(".end_amdhsa_kernel")

dst = sys.argv[1] if len(sys.argv) > 1 else f"cdna_kernels/{NAME}.s"
open(dst, "w").write("\n".join(out) + "\n")
print("wrote", dst, len(out), "lines")
```

```python
import sys, math, os, struct

NAME = "standalone__ragged_sequences_packed_sequences__ragged"
T, H, D = 2266, 16, 128
ROWB = 4096
KPAD, VPAD = 1040, 1088
KBLK, VBLK = 8 * KPAD, 8 * VPAD
NSLOT = 8
KRING = 0
VRING = NSLOT * KBLK
SCR = VRING + NSLOT * VBLK
SROW = 80
SCRW = 32 * SROW
CTL = SCR + 8 * SCRW
LDS_BYTES = CTL + 128
CSCALE = (D ** -0.5) * math.log2(math.e)
SUMTHR = 1024.0
DIAG = int(os.environ.get("DIAG", "0"))
XP = os.environ.get("XP", "")
LDF = os.environ.get("LDF", "")

def f2u(x):
    return struct.unpack("<I", struct.pack("<f", x))[0]

jobs = []
for j in range(4):
    jobs.append((964, 1456, 16, 4 * j, 964 + 128 * j, min(964 + 128 * (j + 1), 1456), 0))
for qo, qe, s0 in zip((0, 128, 256, 352), (128, 256, 352, 448), (0, 4, 7, 11)):
    jobs.append((516, 964, 14, s0, 516 + qo, 516 + qe, 0))
for qo, qe, s0 in zip((0, 128, 224, 320), (128, 224, 320, 400), (0, 3, 7, 10)):
    jobs.append((0, 400, 13, s0, qo, qe, 0))
jobs.append((1456, 1702, 8, 0, 1456, 1702, 1))
jobs.append((2021, 2266, 8, 0, 2021, 2266, 1))
jobs.append((1702, 1900, 7, 0, 1702, 1900, 1))
jobs.append((400, 516, 8, 0, 400, 516, 2))
DUAL_B = (1900, 2021)
if "norot" in XP:
    jobs = [(a, b, c, 0, e_, f, g) for (a, b, c, d, e_, f, g) in jobs]
jobs = [jobs[i] for i in (12, 13, 14, 0, 1, 2, 3, 4, 5, 8, 6, 7, 9, 10, 11, 15)]
assert len(jobs) == 16

out = []
def e(s=""):
    out.append("    " + s if s and not s.endswith(":") else s)
def lab(s):
    out.append(s + ":")

S_Q, S_K, S_V, S_O = 4, 6, 8, 12
SRD_Q, SRD_K, SRD_V, SRD_O = 16, 20, 24, 28
s_w0, s_w1 = 32, 33
s_abase, s_aend, s_NB, s_sig0, s_mode = 34, 35, 36, 37, 38
s_wave, s_head256, s_q0, s_qend = 39, 40, 41, 42
s_t, s_t2, s_t3, s_job = 43, 44, 45, 46
s_nu, s_it, s_maskit, s_kv, s_need, s_land = 47, 48, 49, 50, 51, 52
s_kp, s_vp, s_j0 = 53, 54, 55
s_n, s_rowK, s_rowV, s_mK, s_mV, s_posted, s_free = 56, 57, 58, 59, 60, 61, 62
s_p0, s_p1, s_p2, s_p3 = 63, 64, 65, 66
s_rowEnd, s_rowBeg, s_off, s_limA, s_limB, s_pv = 67, 68, 69, 70, 71, 72
s_qs = 73
s_ti = 74

v_lane, v_h4, v_kbase, v_vbase, v_ka, v_va = 1, 2, 3, 4, 5, 6
v_l, v_sum, v_negm, v_ninf, v_ctl, v_prog, v_flag, v_pa = 7, 8, 9, 10, 11, 12, 13, 14
v_dk, v_dv = 5, 6
VT = 232
VQ, VO = 16, 48
VS = [112, 128]
VP = [144, 152]
VC0 = 160
VKF, VVF = 176, 208
VT = 240
VE_ = 252
NVGPR = 256
VL = 176
VSTAMP = 15

def vr(b, n): return f"v[{b}:{b+n-1}]"
def sr(b, n): return f"s[{b}:{b+n-1}]"

def stamp(real=False):
    if not DIAG: return
    op = "s_memrealtime" if real else "s_memtime"
    e(f"{op} s[82:83]")
    e("s_waitcnt lgkmcnt(0)")
    e("s_mov_b32 m0, s84")
    e(f"v_writelane_b32 v{VSTAMP}, s82, m0")
    e("s_add_u32 s84, s84, 1")
def dump_stamps():
    if not DIAG: return
    e("s_load_dwordx2 s[82:83], s[0:1], 48")
    e("s_waitcnt lgkmcnt(0)")
    e(f"s_lshl_b32 s{s_t}, s2, 3")
    e(f"s_add_u32 s{s_t}, s{s_t}, s{s_wave}")
    e(f"s_lshl_b32 s{s_t}, s{s_t}, 8")
    e(f"s_add_u32 s82, s82, s{s_t}")
    e("s_addc_u32 s83, s83, 0")
    e(f"v_lshlrev_b32 v0, 2, v{v_lane}")
    e(f"global_store_dword v0, v{VSTAMP}, s[82:83]")

class Lgkm:
    def __init__(self):
        self.q = []
    def issue(self, name):
        self.q.append(name)
        assert len(self.q) <= 15, f"too many LDS ops outstanding {self.q}"
    def need(self, name):
        if name in self.q:
            i = self.q.index(name)
            n = len(self.q) - i - 1
            e(f"s_waitcnt lgkmcnt({n})")
            self.q = self.q[i + 1:]
    def drain(self):
        e("s_waitcnt lgkmcnt(0)")
        self.q = []
lg = Lgkm()

ool = []

def k_read(s, koff):
    e(f"ds_read_b128 {vr(VKF+4*s,4)}, v{v_ka} offset:{koff+16*s}")
    lg.issue(f"K{s}")
def v_read(f, jj, voff):
    dt, t = f & 3, f >> 2
    e(f"ds_read_b64_tr_b16 {vr(VVF+4*f+2*jj,2)}, v{v_va} offset:{voff+(2*t+jj)*256+64*dt}")
    lg.issue(f"V{f}{jj}")
def qk_mfma(s, dst, c0):
    c = c0 if s == 0 else vr(dst, 16)
    e(f"v_mfma_f32_32x32x16_bf16 {vr(dst,16)}, {vr(VKF+4*s,4)}, {vr(VQ+4*s,4)}, {c}")
def pv_mfma(f, P):
    dt, t = f & 3, f >> 2
    e(f"v_mfma_f32_32x32x16_bf16 {vr(VO+16*dt,16)}, {vr(VVF+4*f,4)}, {vr(P+4*t,4)}, {vr(VO+16*dt,16)}")

def max_chain(S):
    t = VT
    return [
        f"v_max3_f32 v{t}, v{S+0}, v{S+1}, v{S+2}",
        f"v_max3_f32 v{t+1}, v{S+3}, v{S+4}, v{S+5}",
        f"v_max3_f32 v{t+2}, v{S+6}, v{S+7}, v{S+8}",
        f"v_max3_f32 v{t+3}, v{S+9}, v{S+10}, v{S+11}",
        f"v_max3_f32 v{t+4}, v{S+12}, v{S+13}, v{S+14}",
        f"v_max3_f32 v{t}, v{t}, v{t+1}, v{S+15}",
        f"v_max3_f32 v{t+2}, v{t+2}, v{t+3}, v{t+4}",
        f"v_max_f32 v{t}, v{t}, v{t+2}",
        f"v_mov_b32 v{t+1}, v{t}",
        "s_nop 1",
        f"v_permlane32_swap_b32 v{t}, v{t+1}",
        f"v_max_f32 v{t}, v{t}, v{t+1}",
    ]

def mask_code(S):
    b = [f"    v_sub_u32 v{VT}, s{s_kv}, v{v_h4}"]
    for r0 in range(0, 16, 4):
        for r in range(r0, r0 + 4):
            c = (r & 3) + 8 * (r >> 2)
            b.append(f"    v_cmp_lt_i32 s[{86+2*(r&3)}:{87+2*(r&3)}], {c}, v{VT}")
        for r in range(r0, r0 + 4):
            b.append(f"    v_cndmask_b32 v{S+r}, v{v_ninf}, v{S+r}, s[{86+2*(r&3)}:{87+2*(r&3)}]")
    return b

def plain_exp(S, P):
    b = []
    for k in range(0, 16, 2):
        b.append(f"    v_exp_f32 v{VE_}, v{S+k}")
        b.append(f"    v_exp_f32 v{VE_+1}, v{S+k+1}")
        b.append("    s_nop 0")
        if k == 0:
            b.append(f"    v_add_f32 v{v_sum}, v{VE_}, v{VE_+1}")
        else:
            b.append(f"    v_add_f32 v{v_sum}, v{v_sum}, v{VE_}")
            b.append(f"    v_add_f32 v{v_sum}, v{v_sum}, v{VE_+1}")
        b.append(f"    v_cvt_pk_bf16_f32 v{P+k//2}, v{VE_}, v{VE_+1}")
    return b

def adv(reg, step, end, vdst, vbase):
    return [f"s_add_u32 s{reg}, s{reg}, {step}",
            f"s_cmp_eq_u32 s{reg}, {end}",
            f"s_cselect_b32 s{reg}, 0, s{reg}",
            f"v_add_u32 v{vdst}, s{reg}, v{vbase}"]

COST = {"v_exp": 8, "v_cvt": 5}
def cost(x):
    for k, v in COST.items():
        if x.startswith(k): return v
    return 4

def body(par, has_pv, tag, budget=24):
    Sc, Sn = VS[par], VS[1 - par]
    Pc, Pp = VP[par], VP[1 - par]
    koff = 0 if par == 0 else KBLK
    voff = VBLK if par == 0 else 0
    if DIAG >= 2:
        sv = list(lg.q); stamp(); lg.q = sv
    E = lambda k: VE_ + (k & 3)
    seq = []
    for k in range(16):
        seq.append(f"v_exp_f32 v{E(k)}, v{Sc+k}")
        if k == 2:
            seq.append(f"v_add_f32 v{v_sum}, v{E(0)}, v{E(1)}")
        elif k >= 3:
            seq.append(f"v_add_f32 v{v_sum}, v{v_sum}, v{E(k-1)}")
        if k >= 2 and k % 2 == 0:
            seq.append(f"v_cvt_pk_bf16_f32 v{Pc+(k-2)//2}, v{E(k-2)}, v{E(k-1)}")
    seq.append(f"v_add_u32 v{v_prog}, 1, v{v_prog}")
    seq.append(f"v_add_f32 v{v_sum}, v{v_sum}, v{E(15)}")
    seq.append(f"v_cvt_pk_bf16_f32 v{Pc+7}, v{E(14)}, v{E(15)}")
    if has_pv:
        seq.append(f"v_cmp_lt_f32 vcc, {f2u(SUMTHR):#x}, v{v_sum}")
    else:
        seq.append(f"v_cmp_lt_f32 vcc, {f2u(SUMTHR):#x}, v{v_sum}")
        seq.append(f"v_cmp_gt_f32 s[86:87], {f2u(1.0/SUMTHR):#x}, v{v_sum}" if False else f"v_mov_b32 v{VT}, {f2u(1.0/SUMTHR):#x}")
        seq.append(f"v_cmp_gt_f32 s[86:87], v{VT}, v{v_sum}")
    kgap = {10: [0, 1], 11: [2, 3], 12: [4], 13: [5], 14: [6], 15: [7]}
    si = 0
    cum = 0
    BUD = float(os.environ.get("BUD", "26.5"))
    for g in range(16):
        used = cum
        if g < 8:
            if g == 0: lg.need("K3"); used += 4
            if g == 4: lg.need("K7"); used += 4
            qk_mfma(g, Sn, vr(VC0, 16))
        else:
            f = g - 8
            if has_pv:
                if f == 0: lg.need("V31"); used += 4
                if f == 4: lg.need("V71"); used += 4
                pv_mfma(f, Pp)
            else:
                if f == 0: lg.need("F")
        if g == 0:
            e(f"ds_read_b32 v{v_flag}, v{v_ctl}"); lg.issue("F"); used += 4
        if has_pv and 2 <= g <= 9:
            v_read(g - 2, 0, voff); v_read(g - 2, 1, voff); used += 8
        for sk in kgap.get(g, []):
            k_read(sk, koff); used += 4
        if g == 15:
            e(f"ds_write_b32 v{v_pa}, v{v_prog}"); lg.issue("W"); used += 4
        tail = []
        if g == 8:
            e(f"v_readfirstlane_b32 s{s_land}, v{v_flag}"); used += 4
        if g == 9:
            tail += [f"s_cmp_ge_u32 s{s_land}, s{s_it}", f"s_cbranch_scc0 L_poll_{tag}", f"L_polldone_{tag}:"]; used += 10
            ool.append([f"L_poll_{tag}:",
                        f"    ds_read_b32 v{v_flag}, v{v_ctl}",
                        "    s_waitcnt lgkmcnt(0)",
                        f"    v_readfirstlane_b32 s{s_land}, v{v_flag}",
                        f"    s_cmp_ge_u32 s{s_land}, s{s_it}",
                        f"    s_cbranch_scc1 L_polldone_{tag}",
                        "    s_sleep 1",
                        f"    s_branch L_poll_{tag}"])
        if g == 10 and par == 0:
            tail += adv(s_vp, 2 * VBLK, NSLOT * VBLK, v_va, v_vbase)[:3]; used += 12
        if g == 11 and par == 0:
            tail += adv(s_vp, 2 * VBLK, NSLOT * VBLK, v_va, v_vbase)[3:]; used += 4
        if g == 12:
            tail += [f"s_add_u32 s{s_it}, s{s_it}, 1"]; used += 4
        if g == 13 and par == 1:
            tail += adv(s_kp, 2 * KBLK, NSLOT * KBLK, v_ka, v_kbase)[:3]; used += 12
        remaining_gaps = 14 - g
        while si < len(seq) and (used + cost(seq[si]) * 0.5 <= BUD * (g + 1) or g == 14):
            e(seq[si]); used += cost(seq[si]); si += 1
        cum = used
        for x in tail:
            if x.endswith(":"): out.append(x)
            else: e(x)
    assert si == len(seq)
    if par == 1:
        e(adv(s_kp, 2 * KBLK, NSLOT * KBLK, v_ka, v_kbase)[3])
    if not has_pv:
        e("s_or_b64 vcc, vcc, s[86:87]")
    e(f"s_cbranch_vccnz L_ovf_{tag}")
    lab(f"L_ovfdone_{tag}")
    e(f"v_add_f32 v{v_l}, v{v_l}, v{v_sum}")
    r = [f"L_ovf_{tag}:", "    s_nop 7", "    s_nop 7"]
    r += ["    " + x for x in max_chain(Sc)]
    if has_pv:
        r += [f"    v_max_f32 v{VT}, 0, v{VT}",
              f"    v_sub_f32 v{VT+1}, 0, v{VT}",
              f"    v_exp_f32 v{VT+1}, v{VT+1}"]
    r += [f"    v_sub_f32 v{v_negm}, v{v_negm}, v{VT}"]
    for k in range(16):
        r.append(f"    v_sub_f32 v{Sc+k}, v{Sc+k}, v{VT}")
        r.append(f"    v_sub_f32 v{Sn+k}, v{Sn+k}, v{VT}")
        r.append(f"    v_mov_b32 v{VC0+k}, v{v_negm}")
    if has_pv:
        for k in range(64):
            r.append(f"    v_mul_f32 v{VO+k}, v{VT+1}, v{VO+k}")
        r.append(f"    v_mul_f32 v{v_l}, v{VT+1}, v{v_l}")
    r += plain_exp(Sc, Pc)
    r.append(f"    s_branch L_ovfdone_{tag}")
    ool.append(r)

def event(par_next, tag, fin, cont):
    ool.append([f"L_ev_{tag}:",
                f"    s_cmp_eq_u32 s{s_it}, s{s_nu}",
                f"    s_cbranch_scc1 {fin}",
                f"    s_mov_b32 s{s_maskit}, s{s_nu}"] + mask_code(VS[par_next]) + [f"    s_branch {cont}"])

def final_pv(par_last, tag):
    P = VP[par_last]
    voff = VBLK if (1 - par_last) == 0 else 0
    lg.drain()
    for f in range(7):
        v_read(f, 0, voff); v_read(f, 1, voff)
    for f in range(8):
        lg.need(f"V{f}1")
        pv_mfma(f, P)
        if f == 0:
            v_read(7, 0, voff); v_read(7, 1, voff)

out.append(f"; @launch grid=(256,1,1) block=(512,1,1) lds={LDS_BYTES}")
out.append('.amdgcn_target "amdgcn-amd-amdhsa--gfx950"')
out.append(".text")
out.append(f".globl {NAME}_kernel")
out.append(".p2align 8")
out.append(f".type {NAME}_kernel,@function")
lab(f"{NAME}_kernel")
e("s_cmp_ge_u32 s2, 256")
e("s_cbranch_scc1 L_end")
if DIAG:
    e("s_mov_b32 s84, 0"); e(f"v_mov_b32 v{VSTAMP}, 0")
stamp(True); stamp()
if "dbg" in XP:
    e("s_memrealtime s[76:77]")
    e("s_memtime s[78:79]")
e(f"v_lshrrev_b32 v{VT}, 6, v0")
e(f"v_mov_b32 v{v_ctl}, {CTL}")
e(f"v_mov_b32 v{v_flag}, 0")
e(f"v_add_u32 v{VT+1}, 7, v{VT}")
e(f"v_and_b32 v{VT+1}, 7, v{VT+1}")
e(f"v_lshl_add_u32 v{v_pa}, v{VT+1}, 2, v{v_ctl}")
e(f"ds_write_b32 v{v_ctl}, v{v_flag}")
e(f"ds_write_b32 v{v_pa}, v{v_flag} offset:16")
e(f"v_add_u32 v{v_pa}, 16, v{v_pa}")
e(f"v_and_b32 v{v_lane}, 63, v0")
e(f"v_readfirstlane_b32 s{s_wave}, v{VT}")
e("s_waitcnt lgkmcnt(0)")
e("s_load_dwordx8 s[4:11], s[0:1], 0")
e("s_load_dwordx2 s[12:13], s[0:1], 32")
e("s_barrier")
e(f"s_and_b32 s{s_t}, s2, 7")
e(f"s_lshl_b32 s{s_t}, s{s_t}, 1")
e(f"s_bfe_u32 s{s_t2}, s2, 0x10003")
e(f"s_add_u32 s{s_t}, s{s_t}, s{s_t2}")
e(f"s_lshl_b32 s{s_head256}, s{s_t}, 8")
e(f"s_lshr_b32 s{s_job}, s2, 4")
def pack(j):
    a, b, nb, s0, q, qe, mode = jobs[j]
    w0 = a | (b << 12) | (s0 << 24) | (mode << 28)
    w1 = q | (qe << 12) | (nb << 24)
    return w0, w1
w0, w1 = pack(0)
e(f"s_mov_b32 s{s_w0}, {w0:#x}")
e(f"s_mov_b32 s{s_w1}, {w1:#x}")
for j in range(1, 16):
    w0, w1 = pack(j)
    e(f"s_cmp_eq_u32 s{s_job}, {j}")
    e(f"s_cselect_b32 s{s_w0}, {w0:#x}, s{s_w0}")
    e(f"s_cselect_b32 s{s_w1}, {w1:#x}, s{s_w1}")
e(f"s_and_b32 s{s_abase}, s{s_w0}, 0xfff")
e(f"s_bfe_u32 s{s_aend}, s{s_w0}, 0xc000c")
e(f"s_bfe_u32 s{s_sig0}, s{s_w0}, 0x40018")
e(f"s_lshr_b32 s{s_mode}, s{s_w0}, 28")
e(f"s_and_b32 s{s_q0}, s{s_w1}, 0xfff")
e(f"s_bfe_u32 s{s_qend}, s{s_w1}, 0xc000c")
e(f"s_lshr_b32 s{s_NB}, s{s_w1}, 24")
e(f"s_add_u32 s{s_ti}, s{s_wave}, 7")
e(f"s_and_b32 s{s_ti}, s{s_ti}, 7")
e(f"s_lshl_b32 s{s_t}, s{s_ti}, 5")
e(f"s_add_u32 s{s_q0}, s{s_q0}, s{s_t}")
e(f"s_lshr_b32 s{s_t2}, s{s_ti}, 2")
e(f"s_lshl_b32 s{s_t3}, s{s_t2}, 2")
e(f"s_add_u32 s{s_t3}, s{s_t3}, s{s_mode}")
e(f"s_mov_b32 s{s_nu}, s{s_NB}")
e(f"s_mov_b32 s{s_j0}, 0")
e(f"s_sub_u32 s{s_kv}, s{s_aend}, s{s_abase}")
e(f"s_cmp_eq_u32 s{s_mode}, 2")
e(f"s_cselect_b32 s{s_nu}, 4, s{s_nu}")
e(f"s_add_u32 s{s_t}, s{s_t}, {DUAL_B[0]-128}")
e(f"s_cmp_eq_u32 s{s_t3}, 6")
e(f"s_cselect_b32 s{s_q0}, s{s_t}, s{s_q0}")
e(f"s_cselect_b32 s{s_qend}, {DUAL_B[1]}, s{s_qend}")
e(f"s_cselect_b32 s{s_j0}, 4, s{s_j0}")
e(f"s_cselect_b32 s{s_kv}, {DUAL_B[1]-DUAL_B[0]}, s{s_kv}")
e(f"s_cmp_eq_u32 s{s_t3}, 4")
e(f"s_cselect_b32 s{s_qend}, 0, s{s_qend}")
e(f"v_and_b32 v{VT+4}, 31, v{v_lane}")
e(f"v_lshrrev_b32 v{VT+5}, 5, v{v_lane}")
e(f"v_lshrrev_b32 v{VT}, 4, v{v_lane}")
e(f"v_and_b32 v{VT+1}, 15, v{v_lane}")
e(f"v_lshlrev_b32 v{VT+2}, 15, v{VT}")
e(f"v_lshl_add_u32 v{v_dv}, v{VT+1}, 4, v{VT+2}")
e(f"v_and_b32 v{VT+3}, 1, v{VT}")
e(f"v_lshlrev_b32 v{VT+3}, 7, v{VT+3}")
e(f"v_xor_b32 v{v_dk}, v{v_dv}, v{VT+3}")
e(f"s_mul_i32 s{s_qs}, s{s_ti}, {KBLK}")
e(f"s_add_u32 s{s_qs}, s{s_qs}, {4*KBLK}")
e(f"s_mul_i32 s{s_t}, s{s_wave}, {VBLK}")
e(f"s_add_u32 s{s_t}, s{s_t}, {VRING}")
e(f"s_cmp_ge_u32 s{s_ti}, 4")
e(f"s_cselect_b32 s{s_qs}, s{s_t}, s{s_qs}")
e(f"s_cmp_eq_u32 s{s_wave}, 0")
e(f"s_cselect_b32 s{s_qs}, {VRING+4*VBLK}, s{s_qs}")
def srd_rows(dst, ptr, rowreg, endreg):
    e(f"s_lshl_b32 s{s_t}, s{rowreg}, 12")
    e(f"s_add_u32 s{s_t}, s{s_t}, s{s_head256}")
    e(f"s_add_u32 s{dst}, s{ptr}, s{s_t}")
    e(f"s_addc_u32 s{dst+1}, s{ptr+1}, 0")
    e(f"s_sub_i32 s{s_t}, s{endreg}, s{rowreg}")
    e(f"s_lshl_b32 s{s_t}, s{s_t}, 12")
    e(f"s_sub_i32 s{s_t}, s{s_t}, {4096-256}")
    e(f"s_max_i32 s{dst+2}, s{s_t}, 0")
    e(f"s_mov_b32 s{dst+3}, 0x00020000")
e(f"s_lshl_b32 s{s_t2}, s{s_q0}, 12")
e(f"s_add_u32 s{s_t2}, s{s_t2}, s{s_head256}")
e(f"s_sub_i32 s{s_t}, s{s_qend}, s{s_q0}")
e(f"s_lshl_b32 s{s_t}, s{s_t}, 12")
e(f"s_sub_i32 s{s_t}, s{s_t}, {4096-256}")
e(f"s_max_i32 s{SRD_Q+2}, s{s_t}, 0")
e(f"s_mov_b32 s{SRD_Q+3}, 0x00020000")
e(f"s_mov_b32 s{SRD_O+2}, s{SRD_Q+2}")
e(f"s_mov_b32 s{SRD_O+3}, 0x00020000")
e("s_waitcnt lgkmcnt(0)")
stamp()
e(f"s_add_u32 s{SRD_Q}, s{S_Q}, s{s_t2}")
e(f"s_addc_u32 s{SRD_Q+1}, s{S_Q+1}, 0")
def q_dma(tag):
    e(f"s_cmp_lt_u32 s{s_q0}, s{s_qend}")
    e(f"s_cbranch_scc0 L_noq{tag}")
    for u in range(8):
        e(f"s_add_u32 m0, s{s_qs}, {u*KPAD}")
        e(f"s_mov_b32 s{s_t}, {u*ROWB}")
        e(f"buffer_load_dwordx4 v{v_dk}, {sr(SRD_Q,4)}, s{s_t} offen {LDF} lds")
    lab(f"L_noq{tag}")
e(f"s_add_u32 s{SRD_O}, s{S_O}, s{s_t2}")
e(f"s_addc_u32 s{SRD_O+1}, s{S_O+1}, 0")
e(f"s_cmp_eq_u32 s{s_wave}, 0")
e("s_cbranch_scc1 L_loader")
q_dma("c")
e(f"s_lshl_b32 s{s_t}, s{s_mode}, 4")
e(f"s_add_u32 s{s_t}, s{s_t}, s{s_wave}")
e(f"s_cmp_lt_u32 s{s_t}, 20")
e("s_cbranch_scc1 L_noq7")
e(f"s_and_b32 s{s_t}, s{s_t}, 15")
e(f"s_cmp_eq_u32 s{s_t}, 4")
e("s_cbranch_scc0 L_noq7")
e(f"s_add_u32 s{s_t}, s{s_q0}, 128")
e(f"s_mov_b32 s{s_t3}, s{s_qend}")
e(f"s_cmp_eq_u32 s{s_mode}, 2")
e(f"s_cselect_b32 s{s_t}, {DUAL_B[0]+96}, s{s_t}")
e(f"s_cselect_b32 s{s_t3}, {DUAL_B[1]}, s{s_t3}")
e(f"s_sub_i32 s{s_t3}, s{s_t3}, s{s_t}")
e(f"s_lshl_b32 s{s_t3}, s{s_t3}, 12")
e(f"s_sub_i32 s{s_t3}, s{s_t3}, {4096-256}")
e(f"s_max_i32 s{SRD_K+2}, s{s_t3}, 0")
e(f"s_mov_b32 s{SRD_K+3}, 0x00020000")
e(f"s_lshl_b32 s{s_t}, s{s_t}, 12")
e(f"s_add_u32 s{s_t}, s{s_t}, s{s_head256}")
e(f"s_add_u32 s{SRD_K}, s{S_Q}, s{s_t}")
e(f"s_addc_u32 s{SRD_K+1}, s{S_Q+1}, 0")
for u in range(8):
    e(f"s_mov_b32 m0, {VRING+4*VBLK+u*KPAD}")
    e(f"s_mov_b32 s{s_t}, {u*ROWB}")
    e(f"buffer_load_dwordx4 v{v_dk}, {sr(SRD_K,4)}, s{s_t} offen {LDF} lds")
lab("L_noq7")
def kbase_calc():
    e(f"v_and_b32 v{VT+7}, 7, v{VT+4}")
    e(f"v_mul_u32_u24 v{v_kbase}, {KPAD}, v{VT+7}")
    e(f"v_lshrrev_b32 v{VT+7}, 3, v{VT+4}")
    e(f"v_lshl_add_u32 v{v_kbase}, v{VT+7}, 8, v{v_kbase}")
    e(f"v_and_b32 v{VT+7}, 1, v{VT+7}")
    e(f"v_xor_b32 v{VT+7}, v{VT+7}, v{VT+5}")
    e(f"v_lshl_add_u32 v{v_kbase}, v{VT+7}, 7, v{v_kbase}")
    e(f"v_add_u32 v{VT+6}, s{s_qs}, v{v_kbase}")
kbase_calc()
def q_fetch(wait):
    if wait is not None:
        e(f"s_waitcnt vmcnt({wait})")
    for k in range(8):
        e(f"ds_read_b128 {vr(VQ+4*k,4)}, v{VT+6} offset:{16*k}")
    e(f"v_mov_b32 v{v_prog}, 1")
    e("s_waitcnt lgkmcnt(0)")
    e(f"ds_write_b32 v{v_pa}, v{v_prog}")
def ctl_init():
    pass
lab("L_compute")
e(f"s_cmp_lt_u32 s{s_q0}, s{s_qend}")
e("s_cbranch_scc0 L_idle")
if "prio" in XP: e("s_setprio 2")
e(f"v_lshlrev_b32 v{v_h4}, 2, v{VT+5}")
e(f"v_bfe_u32 v{VT+7}, v{v_lane}, 2, 2")
e(f"v_add_u32 v{VT+7}, v{VT+7}, v{v_h4}")
e(f"v_mul_u32_u24 v{v_vbase}, {VPAD}, v{VT+7}")
e(f"v_and_b32 v{VT+7}, 1, v{v_lane}")
e(f"v_lshl_add_u32 v{v_vbase}, v{VT+7}, 5, v{v_vbase}")
e(f"v_bfe_u32 v{VT+7}, v{v_lane}, 4, 1")
e(f"v_lshl_add_u32 v{v_vbase}, v{VT+7}, 4, v{v_vbase}")
e(f"v_bfe_u32 v{VT+7}, v{v_lane}, 1, 1")
e(f"v_lshl_add_u32 v{v_vbase}, v{VT+7}, 3, v{v_vbase}")
e(f"v_add_u32 v{v_vbase}, {VRING}, v{v_vbase}")
e(f"v_mov_b32 v{v_ninf}, 0xff800000")
e(f"v_mov_b32 v{v_l}, 0")
for k in range(4):
    e(f"v_mov_b32 v{VE_+k}, 0")
e(f"v_mov_b32 v{v_negm}, 0")
e("s_nop 0")
for dst in (VO, VO+16, VO+32, VO+48, VC0):
    e(f"v_mfma_f32_32x32x16_bf16 {vr(dst,16)}, {vr(VE_,4)}, {vr(VE_,4)}, 0")
e(f"s_sub_u32 s{s_t}, s{s_nu}, 1")
e(f"s_sub_u32 s{s_maskit}, s{s_t}, s{s_sig0}")
e(f"s_lshl_b32 s{s_t}, s{s_t}, 5")
e(f"s_sub_u32 s{s_kv}, s{s_kv}, s{s_t}")
e(f"s_cmp_ge_u32 s{s_kv}, 32")
e(f"s_cselect_b32 s{s_maskit}, s{s_nu}, s{s_maskit}")
e(f"s_add_u32 s{s_it}, s{s_j0}, 4")
e(f"s_add_u32 s{s_maskit}, s{s_maskit}, s{s_it}")
e(f"s_add_u32 s{s_nu}, s{s_nu}, s{s_it}")
e(f"s_mul_i32 s{s_kp}, s{s_j0}, {KBLK}")
e(f"s_mul_i32 s{s_vp}, s{s_j0}, {VBLK}")
e(f"v_add_u32 v{v_ka}, s{s_kp}, v{v_kbase}")
e(f"v_add_u32 v{v_va}, s{s_vp}, v{v_vbase}")
e(f"s_add_u32 s{s_need}, s{s_j0}, 3")
e(f"s_cmp_eq_u32 s{s_j0}, 0")
e(f"s_cselect_b32 s{s_t3}, 2, s{s_need}")
stamp()
e(f"s_cmp_eq_u32 s{s_wave}, 0")
e("s_cbranch_scc1 L_qdone")
q_fetch(0)
lab("L_qdone")
e(f"s_mov_b32 s86, {f2u(CSCALE):#x}")
e(f"s_mov_b32 s87, {f2u(CSCALE):#x}")
e(f"s_mov_b32 s{s_t2}, 0xffff0000")
for s in range(8):
    for k in range(4):
        q = VQ + 4 * s + k
        e(f"v_lshlrev_b32 v{VT+2*k}, 16, v{q}")
        e(f"v_and_b32 v{VT+2*k+1}, s{s_t2}, v{q}")
    for k in range(8):
        e(f"v_mul_f32 v{VT+k}, s86, v{VT+k}")
    for k in range(4):
        q = VQ + 4 * s + k
        e(f"v_cvt_pk_bf16_f32 v{q}, v{VT+2*k}, v{VT+2*k+1}")
stamp()
lab("L_poll_pre")
e(f"ds_read_b32 v{v_flag}, v{v_ctl}")
e("s_waitcnt lgkmcnt(0)")
e(f"v_readfirstlane_b32 s{s_land}, v{v_flag}")
e(f"s_cmp_ge_u32 s{s_land}, s{s_t3}")
e("s_cbranch_scc1 L_poll_pre_done")
e("s_sleep 1")
e("s_branch L_poll_pre")
lab("L_poll_pre_done")
stamp()
lg.q = []
for s in range(8):
    k_read(s, 0)
def k_read2(s):
    e(f"ds_read_b128 {vr(VKF+4*s,4)}, v{v_ka} offset:{KBLK+16*s}")
    lg.issue(f"N{s}")
for s in range(8):
    lg.need(f"K{s}")
    qk_mfma(s, VS[0], "0")
    if s >= 1: k_read2(s - 1)
k_read2(7)
for x in adv(s_kp, 2 * KBLK, NSLOT * KBLK, v_ka, v_kbase): e(x)
e("s_nop 7")
e(f"s_cmp_eq_u32 s{s_it}, s{s_maskit}")
e("s_cbranch_scc1 L_mask_pre")
lab("L_maskdone_pre")
ool.append(["L_mask_pre:", f"    s_mov_b32 s{s_maskit}, s{s_nu}"] + mask_code(VS[0]) + ["    s_branch L_maskdone_pre"])
lg.drain()
stamp()
body(0, False, "i0")
lg.drain()
e(f"s_mul_i32 s{s_vp}, s{s_j0}, {VBLK}")
e(f"v_add_u32 v{v_va}, s{s_vp}, v{v_vbase}")
stamp()
steady = [f"K{s}" for s in range(8)] + ["W"]
e(f"s_cmp_eq_u32 s{s_it}, s{s_maskit}")
e("s_cbranch_scc1 L_ev_even")
lab("L_loop")
lg.q = list(steady)
body(1, True, "odd")
assert lg.q == steady, lg.q
e(f"s_cmp_eq_u32 s{s_it}, s{s_maskit}")
e("s_cbranch_scc1 L_ev_odd")
lab("L_loop_mid")
body(0, True, "even")
assert lg.q == steady, lg.q
e(f"s_cmp_lg_u32 s{s_it}, s{s_maskit}")
e("s_cbranch_scc1 L_loop")
e("s_branch L_ev_even")
event(0, "odd", "L_fin_odd", "L_loop_mid")
event(1, "even", "L_fin_even", "L_loop")
lab("L_fin_even")
stamp()
lg.q = list(steady)
final_pv(0, "e")
e("s_branch L_epi")
lab("L_fin_odd")
stamp()
lg.q = list(steady)
final_pv(1, "o")
lab("L_epi")
e(f"v_mov_b32 v{VT+1}, v{v_l}")
e("s_nop 1")
e(f"v_permlane32_swap_b32 v{v_l}, v{VT+1}")
e(f"v_add_f32 v{v_l}, v{v_l}, v{VT+1}")
e(f"v_rcp_f32 v{VT+2}, v{v_l}")
va_tw, va_tr, va_st = VT + 8, VT + 9, VT + 10
e(f"s_mul_i32 s{s_t}, s{s_wave}, {SCRW}")
e(f"s_add_u32 s{s_t}, s{s_t}, {SCR}")
e(f"v_and_b32 v{VT}, 31, v{v_lane}")
e(f"v_mul_u32_u24 v{va_tw}, {SROW}, v{VT}")
e(f"v_lshl_add_u32 v{va_tw}, v{v_h4}, 3, v{va_tw}")
e(f"v_add_u32 v{va_tw}, s{s_t}, v{va_tw}")
e(f"v_lshrrev_b32 v{VT}, 2, v{v_lane}")
e(f"v_and_b32 v{VT+1}, 3, v{v_lane}")
e(f"v_mul_u32_u24 v{va_tr}, {SROW}, v{VT}")
e(f"v_lshl_add_u32 v{va_tr}, v{VT+1}, 4, v{va_tr}")
e(f"v_add_u32 v{va_tr}, s{s_t}, v{va_tr}")
e(f"v_lshlrev_b32 v{va_st}, 12, v{VT}")
e(f"v_lshl_add_u32 v{va_st}, v{VT+1}, 4, v{va_st}")
e(f"s_mov_b32 s{s_t2}, {16*ROWB}")
e("s_nop 3")
def norm(dt):
    for k in range(16):
        e(f"v_mul_f32 v{VO+16*dt+k}, v{VT+2}, v{VO+16*dt+k}")
    for k in range(8):
        e(f"v_cvt_pk_bf16_f32 v{VKF+8*dt+k}, v{VO+16*dt+2*k}, v{VO+16*dt+2*k+1}")
norm(0)
for dt in range(4):
    e(f"ds_write_b128 v{va_tw}, {vr(VKF+8*dt,4)}")
    e(f"ds_write_b128 v{va_tw}, {vr(VKF+8*dt+4,4)} offset:16")
    e("s_waitcnt lgkmcnt(0)")
    e(f"ds_read_b128 {vr(VVF+8*dt,4)}, v{va_tr}")
    e(f"ds_read_b128 {vr(VVF+8*dt+4,4)}, v{va_tr} offset:{16*SROW}")
    if dt < 3:
        norm(dt + 1)
    e("s_waitcnt lgkmcnt(0)")
    e(f"buffer_store_dwordx4 {vr(VVF+8*dt,4)}, v{va_st}, {sr(SRD_O,4)}, 0 offen offset:{64*dt} sc1")
    e(f"buffer_store_dwordx4 {vr(VVF+8*dt+4,4)}, v{va_st}, {sr(SRD_O,4)}, s{s_t2} offen offset:{64*dt} sc1")
lab("L_exit")
if "dbg" in XP:
    e("s_waitcnt vmcnt(0)")
    e("s_memrealtime s[92:93]")
    e("s_memtime s[94:95]")
    e("s_load_dwordx2 s[82:83], s[0:1], 40")
    e("s_waitcnt lgkmcnt(0)")
    e("s_and_b32 s80, s2, 31")
    e(f"s_lshl_b32 s81, s{s_wave}, 8")
    e("s_add_u32 s80, s80, s81")
    e(f"s_cmp_eq_u32 s80, {8 + 4*256}")
    e("s_cbranch_scc0 L_nodbg")
    e("s_lshr_b32 s80, s2, 5")
    e("s_lshl_b32 s80, s80, 3")
    e("v_mov_b32 v20, s80")
    e("v_mov_b32 v22, s76")
    e("v_mov_b32 v23, s92")
    e("s_mov_b64 exec, 1")
    e("global_store_dwordx2 v20, v[22:23], s[82:83]")
    lab("L_nodbg")
if DIAG:
    e("s_waitcnt vmcnt(0)")
stamp(); stamp(True)
dump_stamps()
lab("L_end")
e("s_endpgm")

lab("L_idle")
e(f"v_mov_b32 v{v_prog}, 0x7fffffff")
e(f"ds_write_b32 v{v_pa}, v{v_prog}")
if "nopf" not in XP:
    PB0 = int(os.environ.get("PB0", "2")); PW = int(os.environ.get("PW", "4")); PTRIG = int(os.environ.get("PTRIG", "2"))
    segs = [(964, 16, 600, PB0), (516, 14, 600, PB0), (0, 13, 600, PB0), (1456, 8, 1070, PB0), (2021, 8, 1070, PB0), (1702, 7, 1070, PB0), (400, 4, 1070, PB0), (1900, 4, 1070, 0)]
    ent = sorted((b * pace, st + 32 * b) for st, nb, pace, b0 in segs for b in range(b0, nb))
    longj = [j for j in range(16) if jobs[j][6] == 0]
    per = {j: [r for _, r in ent[i::len(longj)]] for i, j in enumerate(longj)}
    NE = max(len(v) for v in per.values()); NE += NE & 1
    e(f"s_lshl_b32 s{s_t}, s{s_mode}, 4")
    e(f"s_add_u32 s{s_t}, s{s_t}, s{s_wave}")
    e(f"s_cmp_eq_u32 s{s_t}, 5")
    e("s_cbranch_scc0 L_exit")
    PR = 56
    for j in longj:
        v = per[j] + [0xfff] * (NE - len(per[j]))
        if j == longj[0]:
            for k in range(NE // 2):
                e(f"s_mov_b32 s{PR+k}, {v[2*k] | (v[2*k+1] << 12):#x}")
        else:
            e(f"s_cmp_eq_u32 s{s_job}, {j}")
            for k in range(NE // 2):
                e(f"s_cselect_b32 s{PR+k}, {v[2*k] | (v[2*k+1] << 12):#x}, s{PR+k}")
    e(f"s_add_u32 s{SRD_K}, s{S_K}, s{s_head256}")
    e(f"s_addc_u32 s{SRD_K+1}, s{S_K+1}, 0")
    e(f"s_add_u32 s{SRD_V}, s{S_V}, s{s_head256}")
    e(f"s_addc_u32 s{SRD_V+1}, s{S_V+1}, 0")
    e(f"s_mov_b32 s{SRD_K+2}, {(T-1)*4096+256}")
    e(f"s_mov_b32 s{SRD_V+2}, {(T-1)*4096+256}")
    e(f"s_mov_b32 s{SRD_K+3}, 0x00020000")
    e(f"s_mov_b32 s{SRD_V+3}, 0x00020000")
    e(f"v_lshrrev_b32 v{VT}, 1, v{v_lane}")
    e(f"v_and_b32 v{VT+1}, 1, v{v_lane}")
    e(f"v_lshlrev_b32 v{VT}, 12, v{VT}")
    e(f"v_lshl_add_u32 v{VT}, v{VT+1}, 7, v{VT}")
    if PTRIG:
        lab("L_pf_wait")
        e(f"ds_read_b32 v{v_flag}, v{v_ctl}")
        e("s_waitcnt lgkmcnt(0)")
        e(f"v_readfirstlane_b32 s{s_land}, v{v_flag}")
        e(f"s_cmp_ge_u32 s{s_land}, {PTRIG}")
        e("s_cbranch_scc1 L_pf_go")
        e("s_sleep 2")
        e("s_branch L_pf_wait")
        lab("L_pf_go")
    for k in range(NE):
        if k & 1:
            e(f"s_bfe_u32 s{s_t}, s{PR+k//2}, 0xc000c")
        else:
            e(f"s_and_b32 s{s_t}, s{PR+k//2}, 0xfff")
        e(f"s_lshl_b32 s{s_t}, s{s_t}, 12")
        if 2 * k >= PW:
            e(f"s_waitcnt vmcnt({PW-2})")
        e(f"buffer_load_dword v{VT+2}, v{VT}, {sr(SRD_K,4)}, s{s_t} offen")
        e(f"buffer_load_dword v{VT+3}, v{VT}, {sr(SRD_V,4)}, s{s_t} offen")
e("s_branch L_exit")
lab("L_loader")
e(f"v_mov_b32 v{VL+11}, {CTL+16}")
for u in range(8):
    e(f"v_add_u32 v{VL+16+u}, {u*ROWB-(u&3)*KPAD}, v{v_dk}")
    e(f"v_add_u32 v{VL+24+u}, {u*ROWB-(u&3)*VPAD}, v{v_dv}")
e(f"s_add_u32 s{SRD_K}, s{S_K}, s{s_head256}")
e(f"s_addc_u32 s{SRD_K+1}, s{S_K+1}, 0")
e(f"s_add_u32 s{SRD_V}, s{S_V}, s{s_head256}")
e(f"s_addc_u32 s{SRD_V+1}, s{S_V+1}, 0")
e(f"s_lshl_b32 s{s_limA}, s{s_aend}, 12")
e(f"s_sub_u32 s{s_limA}, s{s_limA}, {4096-256}")
e(f"s_mov_b32 s{s_limB}, {(DUAL_B[1]-1)*4096+256}")
e(f"s_mov_b32 s{SRD_K+2}, s{s_limA}")
e(f"s_mov_b32 s{SRD_V+2}, s{s_limA}")
e(f"s_mov_b32 s{SRD_K+3}, 0x00020000")
e(f"s_mov_b32 s{SRD_V+3}, 0x00020000")
e(f"s_lshl_b32 s{s_rowBeg}, s{s_abase}, 12")
e(f"s_lshl_b32 s{s_t}, s{s_sig0}, 17")
e(f"s_add_u32 s{s_rowK}, s{s_rowBeg}, s{s_t}")
e(f"s_mov_b32 s{s_rowV}, s{s_rowK}")
e(f"s_lshl_b32 s{s_t}, s{s_NB}, 17")
e(f"s_add_u32 s{s_rowEnd}, s{s_rowBeg}, s{s_t}")
e(f"s_cmp_eq_u32 s{s_mode}, 2")
e(f"s_cselect_b32 s{s_rowEnd}, {(400+128)*4096}, s{s_rowEnd}")
e(f"s_cselect_b32 s{s_rowBeg}, {DUAL_B[0]*4096}, s{s_rowBeg}")
e(f"s_cselect_b32 s{s_limB}, s{s_limB}, s{s_limA}")
e(f"s_mov_b32 s{s_mK}, {KRING}")
e(f"s_mov_b32 s{s_mV}, {VRING}")
WIN = int(os.environ.get("WIN", "5"))
s_iss, s_L, s_nK, s_nV, s_NT, s_fa, s_qp = s_n, s_posted, s_p0, s_p1, s_p2, s_p3, s_pv
e(f"s_mov_b32 s{s_iss}, 0")
e(f"s_mov_b32 s{s_L}, 0")
e(f"s_mov_b32 s{s_nK}, 0")
e(f"s_mov_b32 s{s_nV}, 0")
e(f"s_mov_b32 s{s_free}, 0")
e(f"s_mov_b32 s{s_fa}, 0")
e(f"s_lshl_b32 s{s_NT}, s{s_NB}, 1")

def item(kind):
    srd = SRD_K if kind == "K" else SRD_V
    row = s_rowK if kind == "K" else s_rowV
    m = s_mK if kind == "K" else s_mV
    pad = KPAD if kind == "K" else VPAD
    blk = KBLK if kind == "K" else VBLK
    ring = KRING if kind == "K" else VRING
    vo = VL + 16 if kind == "K" else VL + 24
    cnt = s_nK if kind == "K" else s_nV
    e(f"s_mov_b32 m0, s{m}")
    e(f"s_add_u32 s{s_off}, s{m}, {4*pad}")
    for u in range(8):
        if u == 4:
            e(f"s_mov_b32 m0, s{s_off}")
            e(f"s_add_u32 s{m}, s{m}, {blk}")
        e(f"buffer_load_dwordx4 v{vo+u}, {sr(srd,4)}, s{row} offen offset:{(u&3)*pad} {LDF} lds")
    e(f"s_add_u32 s{row}, s{row}, {32*ROWB}")
    e(f"s_cmp_eq_u32 s{row}, s{s_rowEnd}")
    e(f"s_cselect_b32 s{row}, s{s_rowBeg}, s{row}")
    e(f"s_cselect_b32 s{srd+2}, s{s_limB}, s{srd+2}")
    e(f"s_cmp_eq_u32 s{m}, {ring+NSLOT*blk}")
    e(f"s_cselect_b32 s{m}, {ring}, s{m}")
    e(f"s_add_u32 s{cnt}, s{cnt}, 1")
    e(f"s_add_u32 s{s_iss}, s{s_iss}, 1")
    if DIAG >= 2: stamp()

item("K"); item("K")
kbase_calc()
e(f"s_cmp_lt_u32 s{s_q0}, s{s_qend}")
e(f"s_cselect_b32 s{s_qp}, 1, 0")
e("s_cbranch_scc1 L_ld_top")
e(f"v_mov_b32 v{v_prog}, 0x7fffffff")
e(f"ds_write_b32 v{v_pa}, v{v_prog}")
lab("L_ld_top")
e(f"s_getreg_b32 s{s_t}, hwreg(HW_REG_IB_STS)")
e(f"s_and_b32 s{s_t2}, s{s_t}, 15")
e(f"s_bfe_u32 s{s_t}, s{s_t}, 0x20016")
e(f"s_lshl_b32 s{s_t}, s{s_t}, 4")
e(f"s_add_u32 s{s_t2}, s{s_t2}, s{s_t}")
e(f"s_add_u32 s{s_t2}, s{s_t2}, 7")
e(f"s_lshr_b32 s{s_t2}, s{s_t2}, 3")
e(f"s_sub_u32 s{s_t}, s{s_iss}, s{s_t2}")
e(f"s_cmp_eq_u32 s{s_t}, s{s_L}")
e("s_cbranch_scc1 L_ld_nopost")
e(f"s_mov_b32 s{s_L}, s{s_t}")
e(f"s_sub_i32 s{s_t3}, s{s_t}, 2")
e(f"s_ashr_i32 s{s_t3}, s{s_t3}, 1")
e(f"s_sub_i32 s{s_off}, s{s_t}, s{s_NB}")
e(f"s_max_i32 s{s_t3}, s{s_t3}, s{s_off}")
e(f"s_add_u32 s{s_t3}, s{s_t3}, 3")
e(f"s_cmp_le_u32 s{s_t}, 3")
e(f"s_cselect_b32 s{s_t3}, s{s_t}, s{s_t3}")
e(f"v_mov_b32 v{VL+8}, s{s_t3}")
e(f"ds_write_b32 v{v_ctl}, v{VL+8}")
e(f"s_cmp_eq_u32 s{s_L}, s{s_NT}")
e("s_cbranch_scc1 L_compute")
lab("L_ld_nopost")
e(f"s_cmp_ge_u32 s{s_t2}, {WIN}")
e("s_cbranch_scc1 L_ld_sleep")
e(f"s_cmp_ge_u32 s{s_iss}, s{s_NT}")
e("s_cbranch_scc1 L_ld_sleep")
e(f"s_add_u32 s{s_t}, s{s_nV}, 3")
e(f"s_min_u32 s{s_t}, s{s_t}, s{s_NB}")
e(f"s_cmp_lt_u32 s{s_nK}, s{s_t}")
e("s_cbranch_scc0 L_ld_V")
e(f"s_sub_i32 s{s_t3}, s{s_nK}, 7")
e(f"s_max_i32 s{s_t3}, s{s_t3}, 1")
e(f"s_cmp_eq_u32 s{s_nK}, 8")
e(f"s_cselect_b32 s{s_t3}, 2, s{s_t3}")
e(f"s_cmp_lt_u32 s{s_nK}, 4")
e(f"s_cselect_b32 s{s_t3}, 0, s{s_t3}")
e(f"s_cmp_ge_i32 s{s_free}, s{s_t3}")
e("s_cbranch_scc0 L_ld_poll")
item("K")
e("s_branch L_ld_top")
lab("L_ld_V")
e(f"s_sub_i32 s{s_t3}, s{s_nV}, 5")
e(f"s_cmp_lt_u32 s{s_nV}, 8")
e(f"s_cselect_b32 s{s_t3}, 1, s{s_t3}")
e(f"s_cmp_lt_u32 s{s_nV}, 4")
e(f"s_cselect_b32 s{s_t3}, 0, s{s_t3}")
e(f"s_cmp_ge_i32 s{s_fa}, s{s_t3}")
e("s_cbranch_scc0 L_ld_poll")
item("V")
e("s_branch L_ld_top")
lab("L_ld_poll")
e(f"ds_read_b128 {vr(VL+4,4)}, v{VL+11}")
e(f"ds_read_b128 {vr(VL+12,4)}, v{VL+11} offset:16")
e("s_waitcnt lgkmcnt(0)")
e(f"v_min3_u32 v{VL+4}, v{VL+4}, v{VL+5}, v{VL+6}")
e(f"v_min3_u32 v{VL+12}, v{VL+12}, v{VL+13}, v{VL+14}")
e(f"v_min_u32 v{VL+4}, v{VL+4}, v{VL+7}")
e(f"v_min3_u32 v{VL+12}, v{VL+12}, v{VL+15}, v{VL+4}")
e(f"v_readfirstlane_b32 s{s_t}, v{VL+4}")
e(f"v_readfirstlane_b32 s{s_t2}, v{VL+12}")
e(f"s_min_u32 s{s_t3}, s{s_t}, s{s_qp}")
e(f"s_cmp_eq_u32 s{s_t3}, 0")
e("s_cbranch_scc1 L_ld_noqf")
q_fetch(None)
e(f"s_mov_b32 s{s_qp}, 0")
lab("L_ld_noqf")
e(f"s_add_u32 s{s_t3}, s{s_free}, s{s_fa}")
e(f"s_mov_b32 s{s_free}, s{s_t}")
e(f"s_mov_b32 s{s_fa}, s{s_t2}")
e(f"s_add_u32 s{s_t}, s{s_t}, s{s_t2}")
e(f"s_cmp_lg_u32 s{s_t}, s{s_t3}")
e("s_cbranch_scc1 L_ld_top")
e("s_sleep 2")
lab("L_ld_sleep")
e("s_sleep 1")
e("s_branch L_ld_top")

for b in ool:
    out.extend(b)
out.append('.section .rodata,"a"')
out.append(".p2align 6")
out.append(f".amdhsa_kernel {NAME}_kernel")
out.append(f"  .amdhsa_next_free_vgpr {NVGPR}")
out.append("  .amdhsa_next_free_sgpr 96")
out.append(f"  .amdhsa_accum_offset {NVGPR}")
out.append("  .amdhsa_group_segment_fixed_size 0")
out.append("  .amdhsa_kernarg_size 56")
out.append("  .amdhsa_user_sgpr_count 2")
out.append("  .amdhsa_user_sgpr_kernarg_segment_ptr 1")
out.append("  .amdhsa_system_sgpr_workgroup_id_x 1")
out.append(".end_amdhsa_kernel")

dst = sys.argv[1] if len(sys.argv) > 1 else f"cdna_kernels/{NAME}.s"
open(dst, "w").write("\n".join(out) + "\n")
print("wrote", dst, len(out), "lines")
```

```python
import sys, math, os, struct

NAME = "standalone__ragged_sequences_packed_sequences__ragged"
T, H, D = 2266, 16, 128
ROWB = 4096
KPAD, VPAD = 1040, 1088
KBLK, VBLK = 8 * KPAD, 8 * VPAD
NSLOT = 8
KRING = 0
VRING = NSLOT * KBLK
SCR = VRING + NSLOT * VBLK
SROW = 80
SCRW = 32 * SROW
CTL = SCR + 8 * SCRW
LDS_BYTES = CTL + 128
CSCALE = (D ** -0.5) * math.log2(math.e)
SUMTHR = 1024.0
DIAG = int(os.environ.get("DIAG", "0"))
XP = os.environ.get("XP", "")
LDF = os.environ.get("LDF", "")

def f2u(x):
    return struct.unpack("<I", struct.pack("<f", x))[0]

jobs = []
for j in range(4):
    jobs.append((964, 1456, 16, 4 * j, 964 + 128 * j, min(964 + 128 * (j + 1), 1456), 0))
for qo, qe, s0 in zip((0, 128, 256, 352), (128, 256, 352, 448), (0, 4, 7, 11)):
    jobs.append((516, 964, 14, s0, 516 + qo, 516 + qe, 0))
for qo, qe, s0 in zip((0, 128, 224, 320), (128, 224, 320, 400), (0, 3, 7, 10)):
    jobs.append((0, 400, 13, s0, qo, qe, 0))
jobs.append((1456, 1702, 8, 0, 1456, 1702, 1))
jobs.append((2021, 2266, 8, 0, 2021, 2266, 1))
jobs.append((1702, 1900, 7, 0, 1702, 1900, 1))
jobs.append((400, 516, 8, 0, 400, 516, 2))
DUAL_B = (1900, 2021)
if "norot" in XP:
    jobs = [(a, b, c, 0, e_, f, g) for (a, b, c, d, e_, f, g) in jobs]
jobs = [jobs[i] for i in (12, 13, 14, 0, 1, 2, 3, 4, 5, 8, 6, 7, 9, 10, 11, 15)]
assert len(jobs) == 16

out = []
def e(s=""):
    out.append("    " + s if s and not s.endswith(":") else s)
def lab(s):
    out.append(s + ":")

S_Q, S_K, S_V, S_O = 4, 6, 8, 12
SRD_Q, SRD_K, SRD_V, SRD_O = 16, 20, 24, 28
s_w0, s_w1 = 32, 33
s_abase, s_aend, s_NB, s_sig0, s_mode = 34, 35, 36, 37, 38
s_wave, s_head256, s_q0, s_qend = 39, 40, 41, 42
s_t, s_t2, s_t3, s_job = 43, 44, 45, 46
s_nu, s_it, s_maskit, s_kv, s_need, s_land = 47, 48, 49, 50, 51, 52
s_kp, s_vp, s_j0 = 53, 54, 55
s_n, s_rowK, s_rowV, s_mK, s_mV, s_posted, s_free = 56, 57, 58, 59, 60, 61, 62
s_p0, s_p1, s_p2, s_p3 = 63, 64, 65, 66
s_rowEnd, s_rowBeg, s_off, s_limA, s_limB, s_pv = 67, 68, 69, 70, 71, 72
s_qs = 73
s_ti = 74

v_lane, v_h4, v_kbase, v_vbase, v_ka, v_va = 1, 2, 3, 4, 5, 6
v_l, v_sum, v_negm, v_ninf, v_ctl, v_prog, v_flag, v_pa = 7, 8, 9, 10, 11, 12, 13, 14
v_dk, v_dv = 5, 6
VT = 232
VQ, VO = 16, 48
VS = [112, 128]
VP = [144, 152]
VC0 = 160
VKF, VVF = 176, 208
VT = 240
VE_ = 252
NVGPR = 256
VL = 176
VSTAMP = 15

def vr(b, n): return f"v[{b}:{b+n-1}]"
def sr(b, n): return f"s[{b}:{b+n-1}]"

def stamp(real=False):
    if not DIAG: return
    op = "s_memrealtime" if real else "s_memtime"
    e(f"{op} s[82:83]")
    e("s_waitcnt lgkmcnt(0)")
    e("s_mov_b32 m0, s84")
    e(f"v_writelane_b32 v{VSTAMP}, s82, m0")
    e("s_add_u32 s84, s84, 1")
def dump_stamps():
    if not DIAG: return
    if "dbg2" in XP:
        e("s_load_dwordx2 s[82:83], s[0:1], 40")
        e("s_waitcnt lgkmcnt(0)")
        e(f"s_lshl_b32 s{s_t}, s2, 3")
        e(f"s_add_u32 s{s_t}, s{s_t}, s{s_wave}")
        e(f"s_mov_b32 s{s_t2}, -1")
        e(f"s_cmp_eq_u32 s{s_t}, {48*8+1}")
        e(f"s_cselect_b32 s{s_t2}, 0, s{s_t2}")
        e(f"s_cmp_eq_u32 s{s_t}, {0*8+5}")
        e(f"s_cselect_b32 s{s_t2}, 32, s{s_t2}")
        e(f"s_cmp_eq_u32 s{s_t2}, -1")
        e("s_cbranch_scc1 L_nodump")
        e(f"v_lshlrev_b32 v0, 2, v{v_lane}")
        e(f"v_add_u32 v0, s{s_t2}, v0")
        e(f"v_subrev_u32 v0, 8, v0")
        e(f"v_cmp_le_u32 vcc, 2, v{v_lane}")
        e(f"v_cmp_gt_u32 s[86:87], 10, v{v_lane}")
        e("s_and_b64 exec, vcc, s[86:87]")
        e(f"v_readlane_b32 s{s_t3}, v{VSTAMP}, 1")
        e("s_nop 3")
        e(f"v_subrev_u32 v2, s{s_t3}, v{VSTAMP}")
        e(f"global_store_dword v0, v2, s[82:83]")
        lab("L_nodump")
        return
    e("s_load_dwordx2 s[82:83], s[0:1], 48")
    e("s_waitcnt lgkmcnt(0)")
    e(f"s_lshl_b32 s{s_t}, s2, 3")
    e(f"s_add_u32 s{s_t}, s{s_t}, s{s_wave}")
    e(f"s_lshl_b32 s{s_t}, s{s_t}, 8")
    e(f"s_add_u32 s82, s82, s{s_t}")
    e("s_addc_u32 s83, s83, 0")
    e(f"v_lshlrev_b32 v0, 2, v{v_lane}")
    e(f"global_store_dword v0, v{VSTAMP}, s[82:83]")

class Lgkm:
    def __init__(self):
        self.q = []
    def issue(self, name):
        self.q.append(name)
        assert len(self.q) <= 15, f"too many LDS ops outstanding {self.q}"
    def need(self, name):
        if name in self.q:
            i = self.q.index(name)
            n = len(self.q) - i - 1
            e(f"s_waitcnt lgkmcnt({n})")
            self.q = self.q[i + 1:]
    def drain(self):
        e("s_waitcnt lgkmcnt(0)")
        self.q = []
lg = Lgkm()

ool = []

def k_read(s, koff):
    e(f"ds_read_b128 {vr(VKF+4*s,4)}, v{v_ka} offset:{koff+16*s}")
    lg.issue(f"K{s}")
def v_read(f, jj, voff):
    dt, t = f & 3, f >> 2
    e(f"ds_read_b64_tr_b16 {vr(VVF+4*f+2*jj,2)}, v{v_va} offset:{voff+(2*t+jj)*256+64*dt}")
    lg.issue(f"V{f}{jj}")
def qk_mfma(s, dst, c0):
    c = c0 if s == 0 else vr(dst, 16)
    e(f"v_mfma_f32_32x32x16_bf16 {vr(dst,16)}, {vr(VKF+4*s,4)}, {vr(VQ+4*s,4)}, {c}")
def pv_mfma(f, P):
    dt, t = f & 3, f >> 2
    e(f"v_mfma_f32_32x32x16_bf16 {vr(VO+16*dt,16)}, {vr(VVF+4*f,4)}, {vr(P+4*t,4)}, {vr(VO+16*dt,16)}")

def max_chain(S):
    t = VT
    return [
        f"v_max3_f32 v{t}, v{S+0}, v{S+1}, v{S+2}",
        f"v_max3_f32 v{t+1}, v{S+3}, v{S+4}, v{S+5}",
        f"v_max3_f32 v{t+2}, v{S+6}, v{S+7}, v{S+8}",
        f"v_max3_f32 v{t+3}, v{S+9}, v{S+10}, v{S+11}",
        f"v_max3_f32 v{t+4}, v{S+12}, v{S+13}, v{S+14}",
        f"v_max3_f32 v{t}, v{t}, v{t+1}, v{S+15}",
        f"v_max3_f32 v{t+2}, v{t+2}, v{t+3}, v{t+4}",
        f"v_max_f32 v{t}, v{t}, v{t+2}",
        f"v_mov_b32 v{t+1}, v{t}",
        "s_nop 1",
        f"v_permlane32_swap_b32 v{t}, v{t+1}",
        f"v_max_f32 v{t}, v{t}, v{t+1}",
    ]

def mask_code(S):
    b = [f"    v_sub_u32 v{VT}, s{s_kv}, v{v_h4}"]
    for r0 in range(0, 16, 4):
        for r in range(r0, r0 + 4):
            c = (r & 3) + 8 * (r >> 2)
            b.append(f"    v_cmp_lt_i32 s[{86+2*(r&3)}:{87+2*(r&3)}], {c}, v{VT}")
        for r in range(r0, r0 + 4):
            b.append(f"    v_cndmask_b32 v{S+r}, v{v_ninf}, v{S+r}, s[{86+2*(r&3)}:{87+2*(r&3)}]")
    return b

def plain_exp(S, P):
    b = []
    for k in range(0, 16, 2):
        b.append(f"    v_exp_f32 v{VE_}, v{S+k}")
        b.append(f"    v_exp_f32 v{VE_+1}, v{S+k+1}")
        b.append("    s_nop 0")
        if k == 0:
            b.append(f"    v_add_f32 v{v_sum}, v{VE_}, v{VE_+1}")
        else:
            b.append(f"    v_add_f32 v{v_sum}, v{v_sum}, v{VE_}")
            b.append(f"    v_add_f32 v{v_sum}, v{v_sum}, v{VE_+1}")
        b.append(f"    v_cvt_pk_bf16_f32 v{P+k//2}, v{VE_}, v{VE_+1}")
    return b

def adv(reg, step, end, vdst, vbase):
    return [f"s_add_u32 s{reg}, s{reg}, {step}",
            f"s_cmp_eq_u32 s{reg}, {end}",
            f"s_cselect_b32 s{reg}, 0, s{reg}",
            f"v_add_u32 v{vdst}, s{reg}, v{vbase}"]

COST = {"v_exp": 8, "v_cvt": 5}
def cost(x):
    for k, v in COST.items():
        if x.startswith(k): return v
    return 4

def body(par, has_pv, tag, budget=24):
    Sc, Sn = VS[par], VS[1 - par]
    Pc, Pp = VP[par], VP[1 - par]
    koff = 0 if par == 0 else KBLK
    voff = VBLK if par == 0 else 0
    if DIAG >= 2:
        sv = list(lg.q); stamp(); lg.q = sv
    E = lambda k: VE_ + (k & 3)
    seq = []
    for k in range(16):
        seq.append(f"v_exp_f32 v{E(k)}, v{Sc+k}")
        if k == 2:
            seq.append(f"v_add_f32 v{v_sum}, v{E(0)}, v{E(1)}")
        elif k >= 3:
            seq.append(f"v_add_f32 v{v_sum}, v{v_sum}, v{E(k-1)}")
        if k >= 2 and k % 2 == 0:
            seq.append(f"v_cvt_pk_bf16_f32 v{Pc+(k-2)//2}, v{E(k-2)}, v{E(k-1)}")
    seq.append(f"v_add_u32 v{v_prog}, 1, v{v_prog}")
    seq.append(f"v_add_f32 v{v_sum}, v{v_sum}, v{E(15)}")
    seq.append(f"v_cvt_pk_bf16_f32 v{Pc+7}, v{E(14)}, v{E(15)}")
    if has_pv:
        seq.append(f"v_cmp_lt_f32 vcc, {f2u(SUMTHR):#x}, v{v_sum}")
    else:
        seq.append(f"v_cmp_lt_f32 vcc, {f2u(SUMTHR):#x}, v{v_sum}")
        seq.append(f"v_cmp_gt_f32 s[86:87], {f2u(1.0/SUMTHR):#x}, v{v_sum}" if False else f"v_mov_b32 v{VT}, {f2u(1.0/SUMTHR):#x}")
        seq.append(f"v_cmp_gt_f32 s[86:87], v{VT}, v{v_sum}")
    kgap = {10: [0, 1], 11: [2, 3], 12: [4], 13: [5], 14: [6], 15: [7]}
    si = 0
    cum = 0
    BUD = float(os.environ.get("BUD", "26.5"))
    for g in range(16):
        used = cum
        if g < 8:
            if g == 0: lg.need("K3"); used += 4
            if g == 4: lg.need("K7"); used += 4
            qk_mfma(g, Sn, vr(VC0, 16))
        else:
            f = g - 8
            if has_pv:
                if f == 0: lg.need("V31"); used += 4
                if f == 4: lg.need("V71"); used += 4
                pv_mfma(f, Pp)
            else:
                if f == 0: lg.need("F")
        if g == 0:
            e(f"ds_read_b32 v{v_flag}, v{v_ctl}"); lg.issue("F"); used += 4
        if has_pv and 2 <= g <= 9:
            v_read(g - 2, 0, voff); v_read(g - 2, 1, voff); used += 8
        for sk in kgap.get(g, []):
            k_read(sk, koff); used += 4
        if g == 15:
            e(f"ds_write_b32 v{v_pa}, v{v_prog}"); lg.issue("W"); used += 4
        tail = []
        if g == 8:
            e(f"v_readfirstlane_b32 s{s_land}, v{v_flag}"); used += 4
        if g == 9:
            tail += [f"s_cmp_ge_u32 s{s_land}, s{s_it}", f"s_cbranch_scc0 L_poll_{tag}", f"L_polldone_{tag}:"]; used += 10
            ool.append([f"L_poll_{tag}:",
                        f"    ds_read_b32 v{v_flag}, v{v_ctl}",
                        "    s_waitcnt lgkmcnt(0)",
                        f"    v_readfirstlane_b32 s{s_land}, v{v_flag}",
                        f"    s_cmp_ge_u32 s{s_land}, s{s_it}",
                        f"    s_cbranch_scc1 L_polldone_{tag}",
                        "    s_sleep 1",
                        f"    s_branch L_poll_{tag}"])
        if g == 10 and par == 0:
            tail += adv(s_vp, 2 * VBLK, NSLOT * VBLK, v_va, v_vbase)[:3]; used += 12
        if g == 11 and par == 0:
            tail += adv(s_vp, 2 * VBLK, NSLOT * VBLK, v_va, v_vbase)[3:]; used += 4
        if g == 12:
            tail += [f"s_add_u32 s{s_it}, s{s_it}, 1"]; used += 4
        if g == 13 and par == 1:
            tail += adv(s_kp, 2 * KBLK, NSLOT * KBLK, v_ka, v_kbase)[:3]; used += 12
        remaining_gaps = 14 - g
        while si < len(seq) and (used + cost(seq[si]) * 0.5 <= BUD * (g + 1) or g == 14):
            e(seq[si]); used += cost(seq[si]); si += 1
        cum = used
        for x in tail:
            if x.endswith(":"): out.append(x)
            else: e(x)
    assert si == len(seq)
    if par == 1:
        e(adv(s_kp, 2 * KBLK, NSLOT * KBLK, v_ka, v_kbase)[3])
    if not has_pv:
        e("s_or_b64 vcc, vcc, s[86:87]")
    e(f"s_cbranch_vccnz L_ovf_{tag}")
    lab(f"L_ovfdone_{tag}")
    e(f"v_add_f32 v{v_l}, v{v_l}, v{v_sum}")
    r = [f"L_ovf_{tag}:", "    s_nop 7", "    s_nop 7"]
    r += ["    " + x for x in max_chain(Sc)]
    if has_pv:
        r += [f"    v_max_f32 v{VT}, 0, v{VT}",
              f"    v_sub_f32 v{VT+1}, 0, v{VT}",
              f"    v_exp_f32 v{VT+1}, v{VT+1}"]
    r += [f"    v_sub_f32 v{v_negm}, v{v_negm}, v{VT}"]
    for k in range(16):
        r.append(f"    v_sub_f32 v{Sc+k}, v{Sc+k}, v{VT}")
        r.append(f"    v_sub_f32 v{Sn+k}, v{Sn+k}, v{VT}")
        r.append(f"    v_mov_b32 v{VC0+k}, v{v_negm}")
    if has_pv:
        for k in range(64):
            r.append(f"    v_mul_f32 v{VO+k}, v{VT+1}, v{VO+k}")
        r.append(f"    v_mul_f32 v{v_l}, v{VT+1}, v{v_l}")
    r += plain_exp(Sc, Pc)
    r.append(f"    s_branch L_ovfdone_{tag}")
    ool.append(r)

def event(par_next, tag, fin, cont):
    ool.append([f"L_ev_{tag}:",
                f"    s_cmp_eq_u32 s{s_it}, s{s_nu}",
                f"    s_cbranch_scc1 {fin}",
                f"    s_mov_b32 s{s_maskit}, s{s_nu}"] + mask_code(VS[par_next]) + [f"    s_branch {cont}"])

def final_pv(par_last, tag):
    P = VP[par_last]
    voff = VBLK if (1 - par_last) == 0 else 0
    lg.drain()
    for f in range(7):
        v_read(f, 0, voff); v_read(f, 1, voff)
    for f in range(8):
        lg.need(f"V{f}1")
        pv_mfma(f, P)
        if f == 0:
            v_read(7, 0, voff); v_read(7, 1, voff)

out.append(f"; @launch grid=(256,1,1) block=(512,1,1) lds={LDS_BYTES}")
out.append('.amdgcn_target "amdgcn-amd-amdhsa--gfx950"')
out.append(".text")
out.append(f".globl {NAME}_kernel")
out.append(".p2align 8")
out.append(f".type {NAME}_kernel,@function")
lab(f"{NAME}_kernel")
e("s_cmp_ge_u32 s2, 256")
e("s_cbranch_scc1 L_end")
if DIAG:
    e("s_mov_b32 s84, 0"); e(f"v_mov_b32 v{VSTAMP}, 0")
stamp(True); stamp()
if "dbg" in XP:
    e("s_memrealtime s[76:77]")
    e("s_memtime s[78:79]")
e(f"v_lshrrev_b32 v{VT}, 6, v0")
e(f"v_mov_b32 v{v_ctl}, {CTL}")
e(f"v_mov_b32 v{v_flag}, 0")
e(f"v_add_u32 v{VT+1}, 7, v{VT}")
e(f"v_and_b32 v{VT+1}, 7, v{VT+1}")
e(f"v_lshl_add_u32 v{v_pa}, v{VT+1}, 2, v{v_ctl}")
e(f"ds_write_b32 v{v_ctl}, v{v_flag}")
e(f"ds_write_b32 v{v_pa}, v{v_flag} offset:16")
e(f"v_add_u32 v{v_pa}, 16, v{v_pa}")
e(f"v_and_b32 v{v_lane}, 63, v0")
e(f"v_readfirstlane_b32 s{s_wave}, v{VT}")
e("s_waitcnt lgkmcnt(0)")
e("s_load_dwordx8 s[4:11], s[0:1], 0")
e("s_load_dwordx2 s[12:13], s[0:1], 32")
e("s_barrier")
e(f"s_and_b32 s{s_t}, s2, 7")
e(f"s_lshl_b32 s{s_t}, s{s_t}, 1")
e(f"s_bfe_u32 s{s_t2}, s2, 0x10003")
e(f"s_add_u32 s{s_t}, s{s_t}, s{s_t2}")
e(f"s_lshl_b32 s{s_head256}, s{s_t}, 8")
e(f"s_lshr_b32 s{s_job}, s2, 4")
def pack(j):
    a, b, nb, s0, q, qe, mode = jobs[j]
    w0 = a | (b << 12) | (s0 << 24) | (mode << 28)
    w1 = q | (qe << 12) | (nb << 24)
    return w0, w1
w0, w1 = pack(0)
e(f"s_mov_b32 s{s_w0}, {w0:#x}")
e(f"s_mov_b32 s{s_w1}, {w1:#x}")
for j in range(1, 16):
    w0, w1 = pack(j)
    e(f"s_cmp_eq_u32 s{s_job}, {j}")
    e(f"s_cselect_b32 s{s_w0}, {w0:#x}, s{s_w0}")
    e(f"s_cselect_b32 s{s_w1}, {w1:#x}, s{s_w1}")
e(f"s_and_b32 s{s_abase}, s{s_w0}, 0xfff")
e(f"s_bfe_u32 s{s_aend}, s{s_w0}, 0xc000c")
e(f"s_bfe_u32 s{s_sig0}, s{s_w0}, 0x40018")
e(f"s_lshr_b32 s{s_mode}, s{s_w0}, 28")
e(f"s_and_b32 s{s_q0}, s{s_w1}, 0xfff")
e(f"s_bfe_u32 s{s_qend}, s{s_w1}, 0xc000c")
e(f"s_lshr_b32 s{s_NB}, s{s_w1}, 24")
e(f"s_add_u32 s{s_ti}, s{s_wave}, 7")
e(f"s_and_b32 s{s_ti}, s{s_ti}, 7")
e(f"s_lshl_b32 s{s_t}, s{s_ti}, 5")
e(f"s_add_u32 s{s_q0}, s{s_q0}, s{s_t}")
e(f"s_lshr_b32 s{s_t2}, s{s_ti}, 2")
e(f"s_lshl_b32 s{s_t3}, s{s_t2}, 2")
e(f"s_add_u32 s{s_t3}, s{s_t3}, s{s_mode}")
e(f"s_mov_b32 s{s_nu}, s{s_NB}")
e(f"s_mov_b32 s{s_j0}, 0")
e(f"s_sub_u32 s{s_kv}, s{s_aend}, s{s_abase}")
e(f"s_cmp_eq_u32 s{s_mode}, 2")
e(f"s_cselect_b32 s{s_nu}, 4, s{s_nu}")
e(f"s_add_u32 s{s_t}, s{s_t}, {DUAL_B[0]-128}")
e(f"s_cmp_eq_u32 s{s_t3}, 6")
e(f"s_cselect_b32 s{s_q0}, s{s_t}, s{s_q0}")
e(f"s_cselect_b32 s{s_qend}, {DUAL_B[1]}, s{s_qend}")
e(f"s_cselect_b32 s{s_j0}, 4, s{s_j0}")
e(f"s_cselect_b32 s{s_kv}, {DUAL_B[1]-DUAL_B[0]}, s{s_kv}")
e(f"s_cmp_eq_u32 s{s_t3}, 4")
e(f"s_cselect_b32 s{s_qend}, 0, s{s_qend}")
e(f"v_and_b32 v{VT+4}, 31, v{v_lane}")
e(f"v_lshrrev_b32 v{VT+5}, 5, v{v_lane}")
e(f"v_lshrrev_b32 v{VT}, 4, v{v_lane}")
e(f"v_and_b32 v{VT+1}, 15, v{v_lane}")
e(f"v_lshlrev_b32 v{VT+2}, 15, v{VT}")
e(f"v_lshl_add_u32 v{v_dv}, v{VT+1}, 4, v{VT+2}")
e(f"v_and_b32 v{VT+3}, 1, v{VT}")
e(f"v_lshlrev_b32 v{VT+3}, 7, v{VT+3}")
e(f"v_xor_b32 v{v_dk}, v{v_dv}, v{VT+3}")
e(f"s_mul_i32 s{s_qs}, s{s_ti}, {KBLK}")
e(f"s_add_u32 s{s_qs}, s{s_qs}, {4*KBLK}")
e(f"s_mul_i32 s{s_t}, s{s_wave}, {VBLK}")
e(f"s_add_u32 s{s_t}, s{s_t}, {VRING}")
e(f"s_cmp_ge_u32 s{s_ti}, 4")
e(f"s_cselect_b32 s{s_qs}, s{s_t}, s{s_qs}")
e(f"s_cmp_eq_u32 s{s_wave}, 0")
e(f"s_cselect_b32 s{s_qs}, {VRING+4*VBLK}, s{s_qs}")
def srd_rows(dst, ptr, rowreg, endreg):
    e(f"s_lshl_b32 s{s_t}, s{rowreg}, 12")
    e(f"s_add_u32 s{s_t}, s{s_t}, s{s_head256}")
    e(f"s_add_u32 s{dst}, s{ptr}, s{s_t}")
    e(f"s_addc_u32 s{dst+1}, s{ptr+1}, 0")
    e(f"s_sub_i32 s{s_t}, s{endreg}, s{rowreg}")
    e(f"s_lshl_b32 s{s_t}, s{s_t}, 12")
    e(f"s_sub_i32 s{s_t}, s{s_t}, {4096-256}")
    e(f"s_max_i32 s{dst+2}, s{s_t}, 0")
    e(f"s_mov_b32 s{dst+3}, 0x00020000")
e(f"s_lshl_b32 s{s_t2}, s{s_q0}, 12")
e(f"s_add_u32 s{s_t2}, s{s_t2}, s{s_head256}")
e(f"s_sub_i32 s{s_t}, s{s_qend}, s{s_q0}")
e(f"s_lshl_b32 s{s_t}, s{s_t}, 12")
e(f"s_sub_i32 s{s_t}, s{s_t}, {4096-256}")
e(f"s_max_i32 s{SRD_Q+2}, s{s_t}, 0")
e(f"s_mov_b32 s{SRD_Q+3}, 0x00020000")
e(f"s_mov_b32 s{SRD_O+2}, s{SRD_Q+2}")
e(f"s_mov_b32 s{SRD_O+3}, 0x00020000")
e("s_waitcnt lgkmcnt(0)")
stamp()
e(f"s_add_u32 s{SRD_Q}, s{S_Q}, s{s_t2}")
e(f"s_addc_u32 s{SRD_Q+1}, s{S_Q+1}, 0")
def q_dma(tag):
    e(f"s_cmp_lt_u32 s{s_q0}, s{s_qend}")
    e(f"s_cbranch_scc0 L_noq{tag}")
    for u in range(8):
        e(f"s_add_u32 m0, s{s_qs}, {u*KPAD}")
        e(f"s_mov_b32 s{s_t}, {u*ROWB}")
        e(f"buffer_load_dwordx4 v{v_dk}, {sr(SRD_Q,4)}, s{s_t} offen {LDF} lds")
    lab(f"L_noq{tag}")
e(f"s_add_u32 s{SRD_O}, s{S_O}, s{s_t2}")
e(f"s_addc_u32 s{SRD_O+1}, s{S_O+1}, 0")
e(f"s_cmp_eq_u32 s{s_wave}, 0")
e("s_cbranch_scc1 L_loader")
q_dma("c")
e(f"s_lshl_b32 s{s_t}, s{s_mode}, 4")
e(f"s_add_u32 s{s_t}, s{s_t}, s{s_wave}")
e(f"s_cmp_lt_u32 s{s_t}, 20")
e("s_cbranch_scc1 L_noq7")
e(f"s_and_b32 s{s_t}, s{s_t}, 15")
e(f"s_cmp_eq_u32 s{s_t}, 4")
e("s_cbranch_scc0 L_noq7")
e(f"s_add_u32 s{s_t}, s{s_q0}, 128")
e(f"s_mov_b32 s{s_t3}, s{s_qend}")
e(f"s_cmp_eq_u32 s{s_mode}, 2")
e(f"s_cselect_b32 s{s_t}, {DUAL_B[0]+96}, s{s_t}")
e(f"s_cselect_b32 s{s_t3}, {DUAL_B[1]}, s{s_t3}")
e(f"s_sub_i32 s{s_t3}, s{s_t3}, s{s_t}")
e(f"s_lshl_b32 s{s_t3}, s{s_t3}, 12")
e(f"s_sub_i32 s{s_t3}, s{s_t3}, {4096-256}")
e(f"s_max_i32 s{SRD_K+2}, s{s_t3}, 0")
e(f"s_mov_b32 s{SRD_K+3}, 0x00020000")
e(f"s_lshl_b32 s{s_t}, s{s_t}, 12")
e(f"s_add_u32 s{s_t}, s{s_t}, s{s_head256}")
e(f"s_add_u32 s{SRD_K}, s{S_Q}, s{s_t}")
e(f"s_addc_u32 s{SRD_K+1}, s{S_Q+1}, 0")
for u in range(8):
    e(f"s_mov_b32 m0, {VRING+4*VBLK+u*KPAD}")
    e(f"s_mov_b32 s{s_t}, {u*ROWB}")
    e(f"buffer_load_dwordx4 v{v_dk}, {sr(SRD_K,4)}, s{s_t} offen {LDF} lds")
lab("L_noq7")
def kbase_calc():
    e(f"v_and_b32 v{VT+7}, 7, v{VT+4}")
    e(f"v_mul_u32_u24 v{v_kbase}, {KPAD}, v{VT+7}")
    e(f"v_lshrrev_b32 v{VT+7}, 3, v{VT+4}")
    e(f"v_lshl_add_u32 v{v_kbase}, v{VT+7}, 8, v{v_kbase}")
    e(f"v_and_b32 v{VT+7}, 1, v{VT+7}")
    e(f"v_xor_b32 v{VT+7}, v{VT+7}, v{VT+5}")
    e(f"v_lshl_add_u32 v{v_kbase}, v{VT+7}, 7, v{v_kbase}")
    e(f"v_add_u32 v{VT+6}, s{s_qs}, v{v_kbase}")
kbase_calc()
def q_fetch(wait):
    if wait is not None:
        e(f"s_waitcnt vmcnt({wait})")
    for k in range(8):
        e(f"ds_read_b128 {vr(VQ+4*k,4)}, v{VT+6} offset:{16*k}")
    e(f"v_mov_b32 v{v_prog}, 1")
    e("s_waitcnt lgkmcnt(0)")
    e(f"ds_write_b32 v{v_pa}, v{v_prog}")
def ctl_init():
    pass
lab("L_compute")
e(f"s_cmp_lt_u32 s{s_q0}, s{s_qend}")
e("s_cbranch_scc0 L_idle")
if "prio" in XP: e("s_setprio 2")
e(f"v_lshlrev_b32 v{v_h4}, 2, v{VT+5}")
e(f"v_bfe_u32 v{VT+7}, v{v_lane}, 2, 2")
e(f"v_add_u32 v{VT+7}, v{VT+7}, v{v_h4}")
e(f"v_mul_u32_u24 v{v_vbase}, {VPAD}, v{VT+7}")
e(f"v_and_b32 v{VT+7}, 1, v{v_lane}")
e(f"v_lshl_add_u32 v{v_vbase}, v{VT+7}, 5, v{v_vbase}")
e(f"v_bfe_u32 v{VT+7}, v{v_lane}, 4, 1")
e(f"v_lshl_add_u32 v{v_vbase}, v{VT+7}, 4, v{v_vbase}")
e(f"v_bfe_u32 v{VT+7}, v{v_lane}, 1, 1")
e(f"v_lshl_add_u32 v{v_vbase}, v{VT+7}, 3, v{v_vbase}")
e(f"v_add_u32 v{v_vbase}, {VRING}, v{v_vbase}")
e(f"v_mov_b32 v{v_ninf}, 0xff800000")
e(f"v_mov_b32 v{v_l}, 0")
for k in range(4):
    e(f"v_mov_b32 v{VE_+k}, 0")
e(f"v_mov_b32 v{v_negm}, 0")
e("s_nop 0")
for dst in (VO, VO+16, VO+32, VO+48, VC0):
    e(f"v_mfma_f32_32x32x16_bf16 {vr(dst,16)}, {vr(VE_,4)}, {vr(VE_,4)}, 0")
e(f"s_sub_u32 s{s_t}, s{s_nu}, 1")
e(f"s_sub_u32 s{s_maskit}, s{s_t}, s{s_sig0}")
e(f"s_lshl_b32 s{s_t}, s{s_t}, 5")
e(f"s_sub_u32 s{s_kv}, s{s_kv}, s{s_t}")
e(f"s_cmp_ge_u32 s{s_kv}, 32")
e(f"s_cselect_b32 s{s_maskit}, s{s_nu}, s{s_maskit}")
e(f"s_add_u32 s{s_it}, s{s_j0}, 4")
e(f"s_add_u32 s{s_maskit}, s{s_maskit}, s{s_it}")
e(f"s_add_u32 s{s_nu}, s{s_nu}, s{s_it}")
e(f"s_mul_i32 s{s_kp}, s{s_j0}, {KBLK}")
e(f"s_mul_i32 s{s_vp}, s{s_j0}, {VBLK}")
e(f"v_add_u32 v{v_ka}, s{s_kp}, v{v_kbase}")
e(f"v_add_u32 v{v_va}, s{s_vp}, v{v_vbase}")
e(f"s_add_u32 s{s_need}, s{s_j0}, 3")
e(f"s_cmp_eq_u32 s{s_j0}, 0")
e(f"s_cselect_b32 s{s_t3}, 2, s{s_need}")
stamp()
e(f"s_cmp_eq_u32 s{s_wave}, 0")
e("s_cbranch_scc1 L_qdone")
q_fetch(0)
lab("L_qdone")
e(f"s_mov_b32 s86, {f2u(CSCALE):#x}")
e(f"s_mov_b32 s87, {f2u(CSCALE):#x}")
e(f"s_mov_b32 s{s_t2}, 0xffff0000")
for s in range(8):
    for k in range(4):
        q = VQ + 4 * s + k
        e(f"v_lshlrev_b32 v{VT+2*k}, 16, v{q}")
        e(f"v_and_b32 v{VT+2*k+1}, s{s_t2}, v{q}")
    for k in range(8):
        e(f"v_mul_f32 v{VT+k}, s86, v{VT+k}")
    for k in range(4):
        q = VQ + 4 * s + k
        e(f"v_cvt_pk_bf16_f32 v{q}, v{VT+2*k}, v{VT+2*k+1}")
stamp()
lab("L_poll_pre")
e(f"ds_read_b32 v{v_flag}, v{v_ctl}")
e("s_waitcnt lgkmcnt(0)")
e(f"v_readfirstlane_b32 s{s_land}, v{v_flag}")
e(f"s_cmp_ge_u32 s{s_land}, s{s_t3}")
e("s_cbranch_scc1 L_poll_pre_done")
e("s_sleep 1")
e("s_branch L_poll_pre")
lab("L_poll_pre_done")
stamp()
lg.q = []
for s in range(8):
    k_read(s, 0)
def k_read2(s):
    e(f"ds_read_b128 {vr(VKF+4*s,4)}, v{v_ka} offset:{KBLK+16*s}")
    lg.issue(f"N{s}")
for s in range(8):
    lg.need(f"K{s}")
    qk_mfma(s, VS[0], "0")
    if s >= 1: k_read2(s - 1)
k_read2(7)
for x in adv(s_kp, 2 * KBLK, NSLOT * KBLK, v_ka, v_kbase): e(x)
e("s_nop 7")
e(f"s_cmp_eq_u32 s{s_it}, s{s_maskit}")
e("s_cbranch_scc1 L_mask_pre")
lab("L_maskdone_pre")
ool.append(["L_mask_pre:", f"    s_mov_b32 s{s_maskit}, s{s_nu}"] + mask_code(VS[0]) + ["    s_branch L_maskdone_pre"])
lg.drain()
stamp()
body(0, False, "i0")
lg.drain()
e(f"s_mul_i32 s{s_vp}, s{s_j0}, {VBLK}")
e(f"v_add_u32 v{v_va}, s{s_vp}, v{v_vbase}")
stamp()
steady = [f"K{s}" for s in range(8)] + ["W"]
e(f"s_cmp_eq_u32 s{s_it}, s{s_maskit}")
e("s_cbranch_scc1 L_ev_even")
lab("L_loop")
lg.q = list(steady)
body(1, True, "odd")
assert lg.q == steady, lg.q
e(f"s_cmp_eq_u32 s{s_it}, s{s_maskit}")
e("s_cbranch_scc1 L_ev_odd")
lab("L_loop_mid")
body(0, True, "even")
assert lg.q == steady, lg.q
e(f"s_cmp_lg_u32 s{s_it}, s{s_maskit}")
e("s_cbranch_scc1 L_loop")
e("s_branch L_ev_even")
event(0, "odd", "L_fin_odd", "L_loop_mid")
event(1, "even", "L_fin_even", "L_loop")
lab("L_fin_even")
stamp()
lg.q = list(steady)
final_pv(0, "e")
e("s_branch L_epi")
lab("L_fin_odd")
stamp()
lg.q = list(steady)
final_pv(1, "o")
lab("L_epi")
e(f"v_mov_b32 v{VT+1}, v{v_l}")
e("s_nop 1")
e(f"v_permlane32_swap_b32 v{v_l}, v{VT+1}")
e(f"v_add_f32 v{v_l}, v{v_l}, v{VT+1}")
e(f"v_rcp_f32 v{VT+2}, v{v_l}")
va_tw, va_tr, va_st = VT + 8, VT + 9, VT + 10
e(f"s_mul_i32 s{s_t}, s{s_wave}, {SCRW}")
e(f"s_add_u32 s{s_t}, s{s_t}, {SCR}")
e(f"v_and_b32 v{VT}, 31, v{v_lane}")
e(f"v_mul_u32_u24 v{va_tw}, {SROW}, v{VT}")
e(f"v_lshl_add_u32 v{va_tw}, v{v_h4}, 3, v{va_tw}")
e(f"v_add_u32 v{va_tw}, s{s_t}, v{va_tw}")
e(f"v_lshrrev_b32 v{VT}, 2, v{v_lane}")
e(f"v_and_b32 v{VT+1}, 3, v{v_lane}")
e(f"v_mul_u32_u24 v{va_tr}, {SROW}, v{VT}")
e(f"v_lshl_add_u32 v{va_tr}, v{VT+1}, 4, v{va_tr}")
e(f"v_add_u32 v{va_tr}, s{s_t}, v{va_tr}")
e(f"v_lshlrev_b32 v{va_st}, 12, v{VT}")
e(f"v_lshl_add_u32 v{va_st}, v{VT+1}, 4, v{va_st}")
e(f"s_mov_b32 s{s_t2}, {16*ROWB}")
e("s_nop 3")
def norm(dt):
    for k in range(16):
        e(f"v_mul_f32 v{VO+16*dt+k}, v{VT+2}, v{VO+16*dt+k}")
    for k in range(8):
        e(f"v_cvt_pk_bf16_f32 v{VKF+8*dt+k}, v{VO+16*dt+2*k}, v{VO+16*dt+2*k+1}")
norm(0)
for dt in range(4):
    e(f"ds_write_b128 v{va_tw}, {vr(VKF+8*dt,4)}")
    e(f"ds_write_b128 v{va_tw}, {vr(VKF+8*dt+4,4)} offset:16")
    e("s_waitcnt lgkmcnt(0)")
    e(f"ds_read_b128 {vr(VVF+8*dt,4)}, v{va_tr}")
    e(f"ds_read_b128 {vr(VVF+8*dt+4,4)}, v{va_tr} offset:{16*SROW}")
    if dt < 3:
        norm(dt + 1)
    e("s_waitcnt lgkmcnt(0)")
    e(f"buffer_store_dwordx4 {vr(VVF+8*dt,4)}, v{va_st}, {sr(SRD_O,4)}, 0 offen offset:{64*dt} sc1")
    e(f"buffer_store_dwordx4 {vr(VVF+8*dt+4,4)}, v{va_st}, {sr(SRD_O,4)}, s{s_t2} offen offset:{64*dt} sc1")
lab("L_exit")
if "dbg" in XP:
    e("s_waitcnt vmcnt(0)")
    e("s_memrealtime s[92:93]")
    e("s_memtime s[94:95]")
    e("s_load_dwordx2 s[82:83], s[0:1], 40")
    e("s_waitcnt lgkmcnt(0)")
    e("s_and_b32 s80, s2, 31")
    e(f"s_lshl_b32 s81, s{s_wave}, 8")
    e("s_add_u32 s80, s80, s81")
    e(f"s_cmp_eq_u32 s80, {8 + 4*256}")
    e("s_cbranch_scc0 L_nodbg")
    e("s_lshr_b32 s80, s2, 5")
    e("s_lshl_b32 s80, s80, 3")
    e("v_mov_b32 v20, s80")
    e("v_mov_b32 v22, s76")
    e("v_mov_b32 v23, s92")
    e("s_mov_b64 exec, 1")
    e("global_store_dwordx2 v20, v[22:23], s[82:83]")
    lab("L_nodbg")
if DIAG:
    e("s_waitcnt vmcnt(0)")
stamp(); stamp(True)
dump_stamps()
lab("L_end")
e("s_endpgm")

lab("L_idle")
e(f"v_mov_b32 v{v_prog}, 0x7fffffff")
e(f"ds_write_b32 v{v_pa}, v{v_prog}")
if "nopf" not in XP:
    PB0 = int(os.environ.get("PB0", "2")); PW = int(os.environ.get("PW", "4")); PTRIG = int(os.environ.get("PTRIG", "2"))
    segs = [(964, 16, 600, PB0), (516, 14, 600, PB0), (0, 13, 600, PB0), (1456, 8, 1070, PB0), (2021, 8, 1070, PB0), (1702, 7, 1070, PB0), (400, 4, 1070, PB0), (1900, 4, 1070, 0)]
    ent = sorted((b * pace, st + 32 * b) for st, nb, pace, b0 in segs for b in range(b0, nb))
    longj = [j for j in range(16) if jobs[j][6] == 0]
    per = {j: [r for _, r in ent[i::len(longj)]] for i, j in enumerate(longj)}
    NE = max(len(v) for v in per.values()); NE += NE & 1
    e(f"s_lshl_b32 s{s_t}, s{s_mode}, 4")
    e(f"s_add_u32 s{s_t}, s{s_t}, s{s_wave}")
    e(f"s_cmp_eq_u32 s{s_t}, 5")
    e("s_cbranch_scc0 L_exit")
    PR = 56
    for j in longj:
        v = per[j] + [0xfff] * (NE - len(per[j]))
        if j == longj[0]:
            for k in range(NE // 2):
                e(f"s_mov_b32 s{PR+k}, {v[2*k] | (v[2*k+1] << 12):#x}")
        else:
            e(f"s_cmp_eq_u32 s{s_job}, {j}")
            for k in range(NE // 2):
                e(f"s_cselect_b32 s{PR+k}, {v[2*k] | (v[2*k+1] << 12):#x}, s{PR+k}")
    e(f"s_add_u32 s{SRD_K}, s{S_K}, s{s_head256}")
    e(f"s_addc_u32 s{SRD_K+1}, s{S_K+1}, 0")
    e(f"s_add_u32 s{SRD_V}, s{S_V}, s{s_head256}")
    e(f"s_addc_u32 s{SRD_V+1}, s{S_V+1}, 0")
    e(f"s_mov_b32 s{SRD_K+2}, {(T-1)*4096+256}")
    e(f"s_mov_b32 s{SRD_V+2}, {(T-1)*4096+256}")
    e(f"s_mov_b32 s{SRD_K+3}, 0x00020000")
    e(f"s_mov_b32 s{SRD_V+3}, 0x00020000")
    e(f"v_lshrrev_b32 v{VT}, 1, v{v_lane}")
    e(f"v_and_b32 v{VT+1}, 1, v{v_lane}")
    e(f"v_lshlrev_b32 v{VT}, 12, v{VT}")
    e(f"v_lshl_add_u32 v{VT}, v{VT+1}, 7, v{VT}")
    if PTRIG:
        lab("L_pf_wait")
        e(f"ds_read_b32 v{v_flag}, v{v_ctl}")
        e("s_waitcnt lgkmcnt(0)")
        e(f"v_readfirstlane_b32 s{s_land}, v{v_flag}")
        e(f"s_cmp_ge_u32 s{s_land}, {PTRIG}")
        e("s_cbranch_scc1 L_pf_go")
        e("s_sleep 2")
        e("s_branch L_pf_wait")
        lab("L_pf_go")
    for k in range(NE):
        if k & 1:
            e(f"s_bfe_u32 s{s_t}, s{PR+k//2}, 0xc000c")
        else:
            e(f"s_and_b32 s{s_t}, s{PR+k//2}, 0xfff")
        e(f"s_lshl_b32 s{s_t}, s{s_t}, 12")
        if 2 * k >= PW:
            e(f"s_waitcnt vmcnt({PW-2})")
        e(f"buffer_load_dword v{VT+2}, v{VT}, {sr(SRD_K,4)}, s{s_t} offen")
        e(f"buffer_load_dword v{VT+3}, v{VT}, {sr(SRD_V,4)}, s{s_t} offen")
e("s_branch L_exit")
lab("L_loader")
e(f"v_mov_b32 v{VL+11}, {CTL+16}")
for u in range(8):
    e(f"v_add_u32 v{VL+16+u}, {u*ROWB-(u&3)*KPAD}, v{v_dk}")
    e(f"v_add_u32 v{VL+24+u}, {u*ROWB-(u&3)*VPAD}, v{v_dv}")
e(f"s_add_u32 s{SRD_K}, s{S_K}, s{s_head256}")
e(f"s_addc_u32 s{SRD_K+1}, s{S_K+1}, 0")
e(f"s_add_u32 s{SRD_V}, s{S_V}, s{s_head256}")
e(f"s_addc_u32 s{SRD_V+1}, s{S_V+1}, 0")
e(f"s_lshl_b32 s{s_limA}, s{s_aend}, 12")
e(f"s_sub_u32 s{s_limA}, s{s_limA}, {4096-256}")
e(f"s_mov_b32 s{s_limB}, {(DUAL_B[1]-1)*4096+256}")
e(f"s_mov_b32 s{SRD_K+2}, s{s_limA}")
e(f"s_mov_b32 s{SRD_V+2}, s{s_limA}")
e(f"s_mov_b32 s{SRD_K+3}, 0x00020000")
e(f"s_mov_b32 s{SRD_V+3}, 0x00020000")
e(f"s_lshl_b32 s{s_rowBeg}, s{s_abase}, 12")
e(f"s_lshl_b32 s{s_t}, s{s_sig0}, 17")
e(f"s_add_u32 s{s_rowK}, s{s_rowBeg}, s{s_t}")
e(f"s_mov_b32 s{s_rowV}, s{s_rowK}")
e(f"s_lshl_b32 s{s_t}, s{s_NB}, 17")
e(f"s_add_u32 s{s_rowEnd}, s{s_rowBeg}, s{s_t}")
e(f"s_cmp_eq_u32 s{s_mode}, 2")
e(f"s_cselect_b32 s{s_rowEnd}, {(400+128)*4096}, s{s_rowEnd}")
e(f"s_cselect_b32 s{s_rowBeg}, {DUAL_B[0]*4096}, s{s_rowBeg}")
e(f"s_cselect_b32 s{s_limB}, s{s_limB}, s{s_limA}")
e(f"s_mov_b32 s{s_mK}, {KRING}")
e(f"s_mov_b32 s{s_mV}, {VRING}")
WIN = int(os.environ.get("WIN", "5"))
s_iss, s_L, s_nK, s_nV, s_NT, s_fa, s_qp = s_n, s_posted, s_p0, s_p1, s_p2, s_p3, s_pv
e(f"s_mov_b32 s{s_iss}, 0")
e(f"s_mov_b32 s{s_L}, 0")
e(f"s_mov_b32 s{s_nK}, 0")
e(f"s_mov_b32 s{s_nV}, 0")
e(f"s_mov_b32 s{s_free}, 0")
e(f"s_mov_b32 s{s_fa}, 0")
e(f"s_lshl_b32 s{s_NT}, s{s_NB}, 1")

def item(kind):
    srd = SRD_K if kind == "K" else SRD_V
    row = s_rowK if kind == "K" else s_rowV
    m = s_mK if kind == "K" else s_mV
    pad = KPAD if kind == "K" else VPAD
    blk = KBLK if kind == "K" else VBLK
    ring = KRING if kind == "K" else VRING
    vo = VL + 16 if kind == "K" else VL + 24
    cnt = s_nK if kind == "K" else s_nV
    e(f"s_mov_b32 m0, s{m}")
    e(f"s_add_u32 s{s_off}, s{m}, {4*pad}")
    for u in range(8):
        if u == 4:
            e(f"s_mov_b32 m0, s{s_off}")
            e(f"s_add_u32 s{m}, s{m}, {blk}")
        e(f"buffer_load_dwordx4 v{vo+u}, {sr(srd,4)}, s{row} offen offset:{(u&3)*pad} {LDF} lds")
    e(f"s_add_u32 s{row}, s{row}, {32*ROWB}")
    e(f"s_cmp_eq_u32 s{row}, s{s_rowEnd}")
    e(f"s_cselect_b32 s{row}, s{s_rowBeg}, s{row}")
    e(f"s_cselect_b32 s{srd+2}, s{s_limB}, s{srd+2}")
    e(f"s_cmp_eq_u32 s{m}, {ring+NSLOT*blk}")
    e(f"s_cselect_b32 s{m}, {ring}, s{m}")
    e(f"s_add_u32 s{cnt}, s{cnt}, 1")
    e(f"s_add_u32 s{s_iss}, s{s_iss}, 1")
    if DIAG >= 2: stamp()

item("K"); item("K")
kbase_calc()
e(f"s_cmp_lt_u32 s{s_q0}, s{s_qend}")
e(f"s_cselect_b32 s{s_qp}, 1, 0")
e("s_cbranch_scc1 L_ld_top")
e(f"v_mov_b32 v{v_prog}, 0x7fffffff")
e(f"ds_write_b32 v{v_pa}, v{v_prog}")
lab("L_ld_top")
e(f"s_getreg_b32 s{s_t}, hwreg(HW_REG_IB_STS)")
e(f"s_and_b32 s{s_t2}, s{s_t}, 15")
e(f"s_bfe_u32 s{s_t}, s{s_t}, 0x20016")
e(f"s_lshl_b32 s{s_t}, s{s_t}, 4")
e(f"s_add_u32 s{s_t2}, s{s_t2}, s{s_t}")
e(f"s_add_u32 s{s_t2}, s{s_t2}, 7")
e(f"s_lshr_b32 s{s_t2}, s{s_t2}, 3")
e(f"s_sub_u32 s{s_t}, s{s_iss}, s{s_t2}")
e(f"s_cmp_eq_u32 s{s_t}, s{s_L}")
e("s_cbranch_scc1 L_ld_nopost")
e(f"s_mov_b32 s{s_L}, s{s_t}")
e(f"s_sub_i32 s{s_t3}, s{s_t}, 2")
e(f"s_ashr_i32 s{s_t3}, s{s_t3}, 1")
e(f"s_sub_i32 s{s_off}, s{s_t}, s{s_NB}")
e(f"s_max_i32 s{s_t3}, s{s_t3}, s{s_off}")
e(f"s_add_u32 s{s_t3}, s{s_t3}, 3")
e(f"s_cmp_le_u32 s{s_t}, 3")
e(f"s_cselect_b32 s{s_t3}, s{s_t}, s{s_t3}")
e(f"v_mov_b32 v{VL+8}, s{s_t3}")
e(f"ds_write_b32 v{v_ctl}, v{VL+8}")
e(f"s_cmp_eq_u32 s{s_L}, s{s_NT}")
e("s_cbranch_scc1 L_compute")
lab("L_ld_nopost")
e(f"s_cmp_ge_u32 s{s_t2}, {WIN}")
e("s_cbranch_scc1 L_ld_sleep")
e(f"s_cmp_ge_u32 s{s_iss}, s{s_NT}")
e("s_cbranch_scc1 L_ld_sleep")
e(f"s_add_u32 s{s_t}, s{s_nV}, 3")
e(f"s_min_u32 s{s_t}, s{s_t}, s{s_NB}")
e(f"s_cmp_lt_u32 s{s_nK}, s{s_t}")
e("s_cbranch_scc0 L_ld_V")
e(f"s_sub_i32 s{s_t3}, s{s_nK}, 7")
e(f"s_max_i32 s{s_t3}, s{s_t3}, 1")
e(f"s_cmp_eq_u32 s{s_nK}, 8")
e(f"s_cselect_b32 s{s_t3}, 2, s{s_t3}")
e(f"s_cmp_lt_u32 s{s_nK}, 4")
e(f"s_cselect_b32 s{s_t3}, 0, s{s_t3}")
e(f"s_cmp_ge_i32 s{s_free}, s{s_t3}")
e("s_cbranch_scc0 L_ld_poll")
item("K")
e("s_branch L_ld_top")
lab("L_ld_V")
e(f"s_sub_i32 s{s_t3}, s{s_nV}, 5")
e(f"s_cmp_lt_u32 s{s_nV}, 8")
e(f"s_cselect_b32 s{s_t3}, 1, s{s_t3}")
e(f"s_cmp_lt_u32 s{s_nV}, 4")
e(f"s_cselect_b32 s{s_t3}, 0, s{s_t3}")
e(f"s_cmp_ge_i32 s{s_fa}, s{s_t3}")
e("s_cbranch_scc0 L_ld_poll")
item("V")
e("s_branch L_ld_top")
lab("L_ld_poll")
e(f"ds_read_b128 {vr(VL+4,4)}, v{VL+11}")
e(f"ds_read_b128 {vr(VL+12,4)}, v{VL+11} offset:16")
e("s_waitcnt lgkmcnt(0)")
e(f"v_min3_u32 v{VL+4}, v{VL+4}, v{VL+5}, v{VL+6}")
e(f"v_min3_u32 v{VL+12}, v{VL+12}, v{VL+13}, v{VL+14}")
e(f"v_min_u32 v{VL+4}, v{VL+4}, v{VL+7}")
e(f"v_min3_u32 v{VL+12}, v{VL+12}, v{VL+15}, v{VL+4}")
e(f"v_readfirstlane_b32 s{s_t}, v{VL+4}")
e(f"v_readfirstlane_b32 s{s_t2}, v{VL+12}")
e(f"s_min_u32 s{s_t3}, s{s_t}, s{s_qp}")
e(f"s_cmp_eq_u32 s{s_t3}, 0")
e("s_cbranch_scc1 L_ld_noqf")
q_fetch(None)
e(f"s_mov_b32 s{s_qp}, 0")
lab("L_ld_noqf")
e(f"s_add_u32 s{s_t3}, s{s_free}, s{s_fa}")
e(f"s_mov_b32 s{s_free}, s{s_t}")
e(f"s_mov_b32 s{s_fa}, s{s_t2}")
e(f"s_add_u32 s{s_t}, s{s_t}, s{s_t2}")
e(f"s_cmp_lg_u32 s{s_t}, s{s_t3}")
e("s_cbranch_scc1 L_ld_top")
e("s_sleep 2")
lab("L_ld_sleep")
e("s_sleep 1")
e("s_branch L_ld_top")

for b in ool:
    out.extend(b)
out.append('.section .rodata,"a"')
out.append(".p2align 6")
out.append(f".amdhsa_kernel {NAME}_kernel")
out.append(f"  .amdhsa_next_free_vgpr {NVGPR}")
out.append("  .amdhsa_next_free_sgpr 96")
out.append(f"  .amdhsa_accum_offset {NVGPR}")
out.append("  .amdhsa_group_segment_fixed_size 0")
out.append("  .amdhsa_kernarg_size 56")
out.append("  .amdhsa_user_sgpr_count 2")
out.append("  .amdhsa_user_sgpr_kernarg_segment_ptr 1")
out.append("  .amdhsa_system_sgpr_workgroup_id_x 1")
out.append(".end_amdhsa_kernel")

dst = sys.argv[1] if len(sys.argv) > 1 else f"cdna_kernels/{NAME}.s"
open(dst, "w").write("\n".join(out) + "\n")
print("wrote", dst, len(out), "lines")
```

```python
import sys, math, os, struct

NAME = "standalone__ragged_sequences_packed_sequences__ragged"
T, H, D = 2266, 16, 128
ROWB = 4096
KPAD, VPAD = 1040, 1088
KBLK, VBLK = 8 * KPAD, 8 * VPAD
NSLOT = 8
KRING = 0
VRING = NSLOT * KBLK
SCR = VRING + NSLOT * VBLK
SROW = 80
SCRW = 32 * SROW
CTL = SCR + 8 * SCRW
LDS_BYTES = CTL + 128
CSCALE = (D ** -0.5) * math.log2(math.e)
SUMTHR = 1024.0
DIAG = int(os.environ.get("DIAG", "0"))
XP = os.environ.get("XP", "")
LDF = os.environ.get("LDF", "")

def f2u(x):
    return struct.unpack("<I", struct.pack("<f", x))[0]

jobs = []
for j in range(4):
    jobs.append((964, 1456, 16, 4 * j, 964 + 128 * j, min(964 + 128 * (j + 1), 1456), 0))
for qo, qe, s0 in zip((0, 128, 256, 352), (128, 256, 352, 448), (0, 4, 7, 11)):
    jobs.append((516, 964, 14, s0, 516 + qo, 516 + qe, 0))
for qo, qe, s0 in zip((0, 128, 224, 320), (128, 224, 320, 400), (0, 3, 7, 10)):
    jobs.append((0, 400, 13, s0, qo, qe, 0))
jobs.append((1456, 1702, 8, 0, 1456, 1702, 1))
jobs.append((2021, 2266, 8, 0, 2021, 2266, 1))
jobs.append((1702, 1900, 7, 0, 1702, 1900, 1))
jobs.append((400, 516, 8, 0, 400, 516, 2))
DUAL_B = (1900, 2021)
if "norot" in XP:
    jobs = [(a, b, c, 0, e_, f, g) for (a, b, c, d, e_, f, g) in jobs]
jobs = [jobs[i] for i in (12, 13, 14, 0, 1, 2, 3, 4, 5, 8, 6, 7, 9, 10, 11, 15)]
assert len(jobs) == 16

out = []
def e(s=""):
    out.append("    " + s if s and not s.endswith(":") else s)
def lab(s):
    out.append(s + ":")

S_Q, S_K, S_V, S_O = 4, 6, 8, 12
SRD_Q, SRD_K, SRD_V, SRD_O = 16, 20, 24, 28
s_w0, s_w1 = 32, 33
s_abase, s_aend, s_NB, s_sig0, s_mode = 34, 35, 36, 37, 38
s_wave, s_head256, s_q0, s_qend = 39, 40, 41, 42
s_t, s_t2, s_t3, s_job = 43, 44, 45, 46
s_nu, s_it, s_maskit, s_kv, s_need, s_land = 47, 48, 49, 50, 51, 52
s_kp, s_vp, s_j0 = 53, 54, 55
s_n, s_rowK, s_rowV, s_mK, s_mV, s_posted, s_free = 56, 57, 58, 59, 60, 61, 62
s_p0, s_p1, s_p2, s_p3 = 63, 64, 65, 66
s_rowEnd, s_rowBeg, s_off, s_limA, s_limB, s_pv = 67, 68, 69, 70, 71, 72
s_qs = 73
s_ti = 74

v_lane, v_h4, v_kbase, v_vbase, v_ka, v_va = 1, 2, 3, 4, 5, 6
v_l, v_sum, v_negm, v_ninf, v_ctl, v_prog, v_flag, v_pa = 7, 8, 9, 10, 11, 12, 13, 14
v_dk, v_dv = 5, 6
VT = 232
VQ, VO = 16, 48
VS = [112, 128]
VP = [144, 152]
VC0 = 160
VKF, VVF = 176, 208
VT = 240
VE_ = 252
NVGPR = 256
VL = 176
VSTAMP = 15

def vr(b, n): return f"v[{b}:{b+n-1}]"
def sr(b, n): return f"s[{b}:{b+n-1}]"

def stamp(real=False):
    if not DIAG: return
    op = "s_memrealtime" if real else "s_memtime"
    e(f"{op} s[82:83]")
    e("s_waitcnt lgkmcnt(0)")
    e("s_mov_b32 m0, s84")
    e(f"v_writelane_b32 v{VSTAMP}, s82, m0")
    e("s_add_u32 s84, s84, 1")
def dump_stamps():
    if not DIAG: return
    if "dbg2" in XP:
        e("s_load_dwordx2 s[82:83], s[0:1], 40")
        e("s_waitcnt lgkmcnt(0)")
        e(f"s_lshl_b32 s{s_t}, s2, 3")
        e(f"s_add_u32 s{s_t}, s{s_t}, s{s_wave}")
        e(f"s_mov_b32 s{s_t2}, -1")
        e(f"s_cmp_eq_u32 s{s_t}, {48*8+1}")
        e(f"s_cselect_b32 s{s_t2}, 0, s{s_t2}")
        e(f"s_cmp_eq_u32 s{s_t}, {0*8+5}")
        e(f"s_cselect_b32 s{s_t2}, 32, s{s_t2}")
        e(f"s_cmp_eq_u32 s{s_t2}, -1")
        e("s_cbranch_scc1 L_nodump")
        e(f"v_lshlrev_b32 v0, 2, v{v_lane}")
        e(f"v_add_u32 v0, s{s_t2}, v0")
        e(f"v_subrev_u32 v0, 8, v0")
        e(f"v_cmp_le_u32 vcc, 2, v{v_lane}")
        e(f"v_cmp_gt_u32 s[86:87], 10, v{v_lane}")
        e("s_and_b64 exec, vcc, s[86:87]")
        e(f"v_readlane_b32 s{s_t3}, v{VSTAMP}, 1")
        e("s_nop 3")
        e(f"v_subrev_u32 v2, s{s_t3}, v{VSTAMP}")
        e(f"global_store_dword v0, v2, s[82:83]")
        lab("L_nodump")
        return
    e("s_load_dwordx2 s[82:83], s[0:1], 48")
    e("s_waitcnt lgkmcnt(0)")
    e(f"s_lshl_b32 s{s_t}, s2, 3")
    e(f"s_add_u32 s{s_t}, s{s_t}, s{s_wave}")
    e(f"s_lshl_b32 s{s_t}, s{s_t}, 8")
    e(f"s_add_u32 s82, s82, s{s_t}")
    e("s_addc_u32 s83, s83, 0")
    e(f"v_lshlrev_b32 v0, 2, v{v_lane}")
    e(f"global_store_dword v0, v{VSTAMP}, s[82:83]")

class Lgkm:
    def __init__(self):
        self.q = []
    def issue(self, name):
        self.q.append(name)
        assert len(self.q) <= 15, f"too many LDS ops outstanding {self.q}"
    def need(self, name):
        if name in self.q:
            i = self.q.index(name)
            n = len(self.q) - i - 1
            e(f"s_waitcnt lgkmcnt({n})")
            self.q = self.q[i + 1:]
    def drain(self):
        e("s_waitcnt lgkmcnt(0)")
        self.q = []
lg = Lgkm()

ool = []

def k_read(s, koff):
    e(f"ds_read_b128 {vr(VKF+4*s,4)}, v{v_ka} offset:{koff+16*s}")
    lg.issue(f"K{s}")
def v_read(f, jj, voff):
    dt, t = f & 3, f >> 2
    e(f"ds_read_b64_tr_b16 {vr(VVF+4*f+2*jj,2)}, v{v_va} offset:{voff+(2*t+jj)*256+64*dt}")
    lg.issue(f"V{f}{jj}")
def qk_mfma(s, dst, c0):
    c = c0 if s == 0 else vr(dst, 16)
    e(f"v_mfma_f32_32x32x16_bf16 {vr(dst,16)}, {vr(VKF+4*s,4)}, {vr(VQ+4*s,4)}, {c}")
def pv_mfma(f, P):
    dt, t = f & 3, f >> 2
    e(f"v_mfma_f32_32x32x16_bf16 {vr(VO+16*dt,16)}, {vr(VVF+4*f,4)}, {vr(P+4*t,4)}, {vr(VO+16*dt,16)}")

def max_chain(S):
    t = VT
    return [
        f"v_max3_f32 v{t}, v{S+0}, v{S+1}, v{S+2}",
        f"v_max3_f32 v{t+1}, v{S+3}, v{S+4}, v{S+5}",
        f"v_max3_f32 v{t+2}, v{S+6}, v{S+7}, v{S+8}",
        f"v_max3_f32 v{t+3}, v{S+9}, v{S+10}, v{S+11}",
        f"v_max3_f32 v{t+4}, v{S+12}, v{S+13}, v{S+14}",
        f"v_max3_f32 v{t}, v{t}, v{t+1}, v{S+15}",
        f"v_max3_f32 v{t+2}, v{t+2}, v{t+3}, v{t+4}",
        f"v_max_f32 v{t}, v{t}, v{t+2}",
        f"v_mov_b32 v{t+1}, v{t}",
        "s_nop 1",
        f"v_permlane32_swap_b32 v{t}, v{t+1}",
        f"v_max_f32 v{t}, v{t}, v{t+1}",
    ]

def mask_code(S):
    b = [f"    v_sub_u32 v{VT}, s{s_kv}, v{v_h4}"]
    for r0 in range(0, 16, 4):
        for r in range(r0, r0 + 4):
            c = (r & 3) + 8 * (r >> 2)
            b.append(f"    v_cmp_lt_i32 s[{86+2*(r&3)}:{87+2*(r&3)}], {c}, v{VT}")
        for r in range(r0, r0 + 4):
            b.append(f"    v_cndmask_b32 v{S+r}, v{v_ninf}, v{S+r}, s[{86+2*(r&3)}:{87+2*(r&3)}]")
    return b

def plain_exp(S, P):
    b = []
    for k in range(0, 16, 2):
        b.append(f"    v_exp_f32 v{VE_}, v{S+k}")
        b.append(f"    v_exp_f32 v{VE_+1}, v{S+k+1}")
        b.append("    s_nop 0")
        if k == 0:
            b.append(f"    v_add_f32 v{v_sum}, v{VE_}, v{VE_+1}")
        else:
            b.append(f"    v_add_f32 v{v_sum}, v{v_sum}, v{VE_}")
            b.append(f"    v_add_f32 v{v_sum}, v{v_sum}, v{VE_+1}")
        b.append(f"    v_cvt_pk_bf16_f32 v{P+k//2}, v{VE_}, v{VE_+1}")
    return b

def adv(reg, step, end, vdst, vbase):
    return [f"s_add_u32 s{reg}, s{reg}, {step}",
            f"s_cmp_eq_u32 s{reg}, {end}",
            f"s_cselect_b32 s{reg}, 0, s{reg}",
            f"v_add_u32 v{vdst}, s{reg}, v{vbase}"]

COST = {"v_exp": 8, "v_cvt": 5}
def cost(x):
    for k, v in COST.items():
        if x.startswith(k): return v
    return 4

def body(par, has_pv, tag, budget=24):
    Sc, Sn = VS[par], VS[1 - par]
    Pc, Pp = VP[par], VP[1 - par]
    koff = 0 if par == 0 else KBLK
    voff = VBLK if par == 0 else 0
    if DIAG >= 2:
        sv = list(lg.q); stamp(); lg.q = sv
    E = lambda k: VE_ + (k & 3)
    seq = []
    for k in range(16):
        seq.append(f"v_exp_f32 v{E(k)}, v{Sc+k}")
        if k == 2:
            seq.append(f"v_add_f32 v{v_sum}, v{E(0)}, v{E(1)}")
        elif k >= 3:
            seq.append(f"v_add_f32 v{v_sum}, v{v_sum}, v{E(k-1)}")
        if k >= 2 and k % 2 == 0:
            seq.append(f"v_cvt_pk_bf16_f32 v{Pc+(k-2)//2}, v{E(k-2)}, v{E(k-1)}")
    seq.append(f"v_add_u32 v{v_prog}, 1, v{v_prog}")
    seq.append(f"v_add_f32 v{v_sum}, v{v_sum}, v{E(15)}")
    seq.append(f"v_cvt_pk_bf16_f32 v{Pc+7}, v{E(14)}, v{E(15)}")
    if has_pv:
        seq.append(f"v_cmp_lt_f32 vcc, {f2u(SUMTHR):#x}, v{v_sum}")
    else:
        seq.append(f"v_cmp_lt_f32 vcc, {f2u(SUMTHR):#x}, v{v_sum}")
        seq.append(f"v_cmp_gt_f32 s[86:87], {f2u(1.0/SUMTHR):#x}, v{v_sum}" if False else f"v_mov_b32 v{VT}, {f2u(1.0/SUMTHR):#x}")
        seq.append(f"v_cmp_gt_f32 s[86:87], v{VT}, v{v_sum}")
    kgap = {10: [0, 1], 11: [2, 3], 12: [4], 13: [5], 14: [6], 15: [7]}
    si = 0
    cum = 0
    BUD = float(os.environ.get("BUD", "26.5"))
    for g in range(16):
        used = cum
        if g < 8:
            if g == 0: lg.need("K3"); used += 4
            if g == 4: lg.need("K7"); used += 4
            qk_mfma(g, Sn, vr(VC0, 16))
        else:
            f = g - 8
            if has_pv:
                if f == 0: lg.need("V31"); used += 4
                if f == 4: lg.need("V71"); used += 4
                pv_mfma(f, Pp)
            else:
                if f == 0: lg.need("F")
        if g == 0:
            e(f"ds_read_b32 v{v_flag}, v{v_ctl}"); lg.issue("F"); used += 4
        if has_pv and 2 <= g <= 9:
            v_read(g - 2, 0, voff); v_read(g - 2, 1, voff); used += 8
        for sk in kgap.get(g, []):
            k_read(sk, koff); used += 4
        if g == 15:
            e(f"ds_write_b32 v{v_pa}, v{v_prog}"); lg.issue("W"); used += 4
        tail = []
        if g == 8:
            e(f"v_readfirstlane_b32 s{s_land}, v{v_flag}"); used += 4
        if g == 9:
            tail += [f"s_cmp_ge_u32 s{s_land}, s{s_it}", f"s_cbranch_scc0 L_poll_{tag}", f"L_polldone_{tag}:"]; used += 10
            ool.append([f"L_poll_{tag}:",
                        f"    ds_read_b32 v{v_flag}, v{v_ctl}",
                        "    s_waitcnt lgkmcnt(0)",
                        f"    v_readfirstlane_b32 s{s_land}, v{v_flag}",
                        f"    s_cmp_ge_u32 s{s_land}, s{s_it}",
                        f"    s_cbranch_scc1 L_polldone_{tag}",
                        "    s_sleep 1",
                        f"    s_branch L_poll_{tag}"])
        if g == 10 and par == 0:
            tail += adv(s_vp, 2 * VBLK, NSLOT * VBLK, v_va, v_vbase)[:3]; used += 12
        if g == 11 and par == 0:
            tail += adv(s_vp, 2 * VBLK, NSLOT * VBLK, v_va, v_vbase)[3:]; used += 4
        if g == 12:
            tail += [f"s_add_u32 s{s_it}, s{s_it}, 1"]; used += 4
        if g == 13 and par == 1:
            tail += adv(s_kp, 2 * KBLK, NSLOT * KBLK, v_ka, v_kbase)[:3]; used += 12
        remaining_gaps = 14 - g
        while si < len(seq) and (used + cost(seq[si]) * 0.5 <= BUD * (g + 1) or g == 14):
            e(seq[si]); used += cost(seq[si]); si += 1
        cum = used
        for x in tail:
            if x.endswith(":"): out.append(x)
            else: e(x)
    assert si == len(seq)
    if par == 1:
        e(adv(s_kp, 2 * KBLK, NSLOT * KBLK, v_ka, v_kbase)[3])
    if not has_pv:
        e("s_or_b64 vcc, vcc, s[86:87]")
    e(f"s_cbranch_vccnz L_ovf_{tag}")
    lab(f"L_ovfdone_{tag}")
    e(f"v_add_f32 v{v_l}, v{v_l}, v{v_sum}")
    r = [f"L_ovf_{tag}:", "    s_nop 7", "    s_nop 7"]
    r += ["    " + x for x in max_chain(Sc)]
    if has_pv:
        r += [f"    v_max_f32 v{VT}, 0, v{VT}",
              f"    v_sub_f32 v{VT+1}, 0, v{VT}",
              f"    v_exp_f32 v{VT+1}, v{VT+1}"]
    r += [f"    v_sub_f32 v{v_negm}, v{v_negm}, v{VT}"]
    for k in range(16):
        r.append(f"    v_sub_f32 v{Sc+k}, v{Sc+k}, v{VT}")
        r.append(f"    v_sub_f32 v{Sn+k}, v{Sn+k}, v{VT}")
        r.append(f"    v_mov_b32 v{VC0+k}, v{v_negm}")
    if has_pv:
        for k in range(64):
            r.append(f"    v_mul_f32 v{VO+k}, v{VT+1}, v{VO+k}")
        r.append(f"    v_mul_f32 v{v_l}, v{VT+1}, v{v_l}")
    r += plain_exp(Sc, Pc)
    r.append(f"    s_branch L_ovfdone_{tag}")
    ool.append(r)

def event(par_next, tag, fin, cont):
    ool.append([f"L_ev_{tag}:",
                f"    s_cmp_eq_u32 s{s_it}, s{s_nu}",
                f"    s_cbranch_scc1 {fin}",
                f"    s_mov_b32 s{s_maskit}, s{s_nu}"] + mask_code(VS[par_next]) + [f"    s_branch {cont}"])

def final_pv(par_last, tag):
    P = VP[par_last]
    voff = VBLK if (1 - par_last) == 0 else 0
    lg.drain()
    for f in range(7):
        v_read(f, 0, voff); v_read(f, 1, voff)
    for f in range(8):
        lg.need(f"V{f}1")
        pv_mfma(f, P)
        if f == 0:
            v_read(7, 0, voff); v_read(7, 1, voff)

out.append(f"; @launch grid=(256,1,1) block=(512,1,1) lds={LDS_BYTES}")
out.append('.amdgcn_target "amdgcn-amd-amdhsa--gfx950"')
out.append(".text")
out.append(f".globl {NAME}_kernel")
out.append(".p2align 8")
out.append(f".type {NAME}_kernel,@function")
lab(f"{NAME}_kernel")
e("s_cmp_ge_u32 s2, 256")
e("s_cbranch_scc1 L_end")
if DIAG:
    e("s_mov_b32 s84, 0"); e(f"v_mov_b32 v{VSTAMP}, 0")
stamp(True); stamp()
if "dbg" in XP:
    e("s_memrealtime s[76:77]")
    e("s_memtime s[78:79]")
if "nocpf" not in XP:
    CPFW = int(os.environ.get("CPFW", "7"))
    e("s_getpc_b64 s[90:91]")
    lab("L_pc0")
    e(f"v_subrev_u32 v{VT+2}, {CPFW*64}, v0")
    e(f"v_cmp_gt_u32 vcc, 64, v{VT+2}")
    e("s_and_saveexec_b64 s[92:93], vcc")
    e("s_cbranch_execz L_nocpf")
    e(f"v_lshlrev_b32 v{VT+2}, 7, v{VT+2}")
    e(f"v_min_u32 v{VT+3}, L_codeend-L_pc0-4, v{VT+2}")
    e(f"global_load_dword v15, v{VT+3}, s[90:91]")
    e(f"v_add_u32 v{VT+2}, 8192, v{VT+2}")
    e(f"v_min_u32 v{VT+3}, L_codeend-L_pc0-4, v{VT+2}")
    e(f"global_load_dword v15, v{VT+3}, s[90:91]")
    lab("L_nocpf")
    e("s_mov_b64 exec, s[92:93]")
e(f"v_lshrrev_b32 v{VT}, 6, v0")
e(f"v_mov_b32 v{v_ctl}, {CTL}")
e(f"v_mov_b32 v{v_flag}, 0")
e(f"v_add_u32 v{VT+1}, 7, v{VT}")
e(f"v_and_b32 v{VT+1}, 7, v{VT+1}")
e(f"v_lshl_add_u32 v{v_pa}, v{VT+1}, 2, v{v_ctl}")
e(f"ds_write_b32 v{v_ctl}, v{v_flag}")
e(f"ds_write_b32 v{v_pa}, v{v_flag} offset:16")
e(f"v_add_u32 v{v_pa}, 16, v{v_pa}")
e(f"v_and_b32 v{v_lane}, 63, v0")
e(f"v_readfirstlane_b32 s{s_wave}, v{VT}")
e("s_waitcnt lgkmcnt(0)")
e("s_load_dwordx8 s[4:11], s[0:1], 0")
e("s_load_dwordx2 s[12:13], s[0:1], 32")
e("s_barrier")
e(f"s_and_b32 s{s_t}, s2, 7")
e(f"s_lshl_b32 s{s_t}, s{s_t}, 1")
e(f"s_bfe_u32 s{s_t2}, s2, 0x10003")
e(f"s_add_u32 s{s_t}, s{s_t}, s{s_t2}")
e(f"s_lshl_b32 s{s_head256}, s{s_t}, 8")
e(f"s_lshr_b32 s{s_job}, s2, 4")
def pack(j):
    a, b, nb, s0, q, qe, mode = jobs[j]
    w0 = a | (b << 12) | (s0 << 24) | (mode << 28)
    w1 = q | (qe << 12) | (nb << 24)
    return w0, w1
w0, w1 = pack(0)
e(f"s_mov_b32 s{s_w0}, {w0:#x}")
e(f"s_mov_b32 s{s_w1}, {w1:#x}")
for j in range(1, 16):
    w0, w1 = pack(j)
    e(f"s_cmp_eq_u32 s{s_job}, {j}")
    e(f"s_cselect_b32 s{s_w0}, {w0:#x}, s{s_w0}")
    e(f"s_cselect_b32 s{s_w1}, {w1:#x}, s{s_w1}")
e(f"s_and_b32 s{s_abase}, s{s_w0}, 0xfff")
e(f"s_bfe_u32 s{s_aend}, s{s_w0}, 0xc000c")
e(f"s_bfe_u32 s{s_sig0}, s{s_w0}, 0x40018")
e(f"s_lshr_b32 s{s_mode}, s{s_w0}, 28")
e(f"s_and_b32 s{s_q0}, s{s_w1}, 0xfff")
e(f"s_bfe_u32 s{s_qend}, s{s_w1}, 0xc000c")
e(f"s_lshr_b32 s{s_NB}, s{s_w1}, 24")
e(f"s_add_u32 s{s_ti}, s{s_wave}, 7")
e(f"s_and_b32 s{s_ti}, s{s_ti}, 7")
e(f"s_lshl_b32 s{s_t}, s{s_ti}, 5")
e(f"s_add_u32 s{s_q0}, s{s_q0}, s{s_t}")
e(f"s_lshr_b32 s{s_t2}, s{s_ti}, 2")
e(f"s_lshl_b32 s{s_t3}, s{s_t2}, 2")
e(f"s_add_u32 s{s_t3}, s{s_t3}, s{s_mode}")
e(f"s_mov_b32 s{s_nu}, s{s_NB}")
e(f"s_mov_b32 s{s_j0}, 0")
e(f"s_sub_u32 s{s_kv}, s{s_aend}, s{s_abase}")
e(f"s_cmp_eq_u32 s{s_mode}, 2")
e(f"s_cselect_b32 s{s_nu}, 4, s{s_nu}")
e(f"s_add_u32 s{s_t}, s{s_t}, {DUAL_B[0]-128}")
e(f"s_cmp_eq_u32 s{s_t3}, 6")
e(f"s_cselect_b32 s{s_q0}, s{s_t}, s{s_q0}")
e(f"s_cselect_b32 s{s_qend}, {DUAL_B[1]}, s{s_qend}")
e(f"s_cselect_b32 s{s_j0}, 4, s{s_j0}")
e(f"s_cselect_b32 s{s_kv}, {DUAL_B[1]-DUAL_B[0]}, s{s_kv}")
e(f"s_cmp_eq_u32 s{s_t3}, 4")
e(f"s_cselect_b32 s{s_qend}, 0, s{s_qend}")
e(f"v_and_b32 v{VT+4}, 31, v{v_lane}")
e(f"v_lshrrev_b32 v{VT+5}, 5, v{v_lane}")
e(f"v_lshrrev_b32 v{VT}, 4, v{v_lane}")
e(f"v_and_b32 v{VT+1}, 15, v{v_lane}")
e(f"v_lshlrev_b32 v{VT+2}, 15, v{VT}")
e(f"v_lshl_add_u32 v{v_dv}, v{VT+1}, 4, v{VT+2}")
e(f"v_and_b32 v{VT+3}, 1, v{VT}")
e(f"v_lshlrev_b32 v{VT+3}, 7, v{VT+3}")
e(f"v_xor_b32 v{v_dk}, v{v_dv}, v{VT+3}")
e(f"s_mul_i32 s{s_qs}, s{s_ti}, {KBLK}")
e(f"s_add_u32 s{s_qs}, s{s_qs}, {4*KBLK}")
e(f"s_mul_i32 s{s_t}, s{s_wave}, {VBLK}")
e(f"s_add_u32 s{s_t}, s{s_t}, {VRING}")
e(f"s_cmp_ge_u32 s{s_ti}, 4")
e(f"s_cselect_b32 s{s_qs}, s{s_t}, s{s_qs}")
e(f"s_cmp_eq_u32 s{s_wave}, 0")
e(f"s_cselect_b32 s{s_qs}, {VRING+4*VBLK}, s{s_qs}")
def srd_rows(dst, ptr, rowreg, endreg):
    e(f"s_lshl_b32 s{s_t}, s{rowreg}, 12")
    e(f"s_add_u32 s{s_t}, s{s_t}, s{s_head256}")
    e(f"s_add_u32 s{dst}, s{ptr}, s{s_t}")
    e(f"s_addc_u32 s{dst+1}, s{ptr+1}, 0")
    e(f"s_sub_i32 s{s_t}, s{endreg}, s{rowreg}")
    e(f"s_lshl_b32 s{s_t}, s{s_t}, 12")
    e(f"s_sub_i32 s{s_t}, s{s_t}, {4096-256}")
    e(f"s_max_i32 s{dst+2}, s{s_t}, 0")
    e(f"s_mov_b32 s{dst+3}, 0x00020000")
e(f"s_lshl_b32 s{s_t2}, s{s_q0}, 12")
e(f"s_add_u32 s{s_t2}, s{s_t2}, s{s_head256}")
e(f"s_sub_i32 s{s_t}, s{s_qend}, s{s_q0}")
e(f"s_lshl_b32 s{s_t}, s{s_t}, 12")
e(f"s_sub_i32 s{s_t}, s{s_t}, {4096-256}")
e(f"s_max_i32 s{SRD_Q+2}, s{s_t}, 0")
e(f"s_mov_b32 s{SRD_Q+3}, 0x00020000")
e(f"s_mov_b32 s{SRD_O+2}, s{SRD_Q+2}")
e(f"s_mov_b32 s{SRD_O+3}, 0x00020000")
e("s_waitcnt lgkmcnt(0)")
stamp()
e(f"s_add_u32 s{SRD_Q}, s{S_Q}, s{s_t2}")
e(f"s_addc_u32 s{SRD_Q+1}, s{S_Q+1}, 0")
def q_dma(tag):
    e(f"s_cmp_lt_u32 s{s_q0}, s{s_qend}")
    e(f"s_cbranch_scc0 L_noq{tag}")
    for u in range(8):
        e(f"s_add_u32 m0, s{s_qs}, {u*KPAD}")
        e(f"s_mov_b32 s{s_t}, {u*ROWB}")
        e(f"buffer_load_dwordx4 v{v_dk}, {sr(SRD_Q,4)}, s{s_t} offen {LDF} lds")
    lab(f"L_noq{tag}")
e(f"s_add_u32 s{SRD_O}, s{S_O}, s{s_t2}")
e(f"s_addc_u32 s{SRD_O+1}, s{S_O+1}, 0")
e(f"s_cmp_eq_u32 s{s_wave}, 0")
e("s_cbranch_scc1 L_loader")
q_dma("c")
e(f"s_lshl_b32 s{s_t}, s{s_mode}, 4")
e(f"s_add_u32 s{s_t}, s{s_t}, s{s_wave}")
e(f"s_cmp_lt_u32 s{s_t}, 20")
e("s_cbranch_scc1 L_noq7")
e(f"s_and_b32 s{s_t}, s{s_t}, 15")
e(f"s_cmp_eq_u32 s{s_t}, 4")
e("s_cbranch_scc0 L_noq7")
e(f"s_add_u32 s{s_t}, s{s_q0}, 128")
e(f"s_mov_b32 s{s_t3}, s{s_qend}")
e(f"s_cmp_eq_u32 s{s_mode}, 2")
e(f"s_cselect_b32 s{s_t}, {DUAL_B[0]+96}, s{s_t}")
e(f"s_cselect_b32 s{s_t3}, {DUAL_B[1]}, s{s_t3}")
e(f"s_sub_i32 s{s_t3}, s{s_t3}, s{s_t}")
e(f"s_lshl_b32 s{s_t3}, s{s_t3}, 12")
e(f"s_sub_i32 s{s_t3}, s{s_t3}, {4096-256}")
e(f"s_max_i32 s{SRD_K+2}, s{s_t3}, 0")
e(f"s_mov_b32 s{SRD_K+3}, 0x00020000")
e(f"s_lshl_b32 s{s_t}, s{s_t}, 12")
e(f"s_add_u32 s{s_t}, s{s_t}, s{s_head256}")
e(f"s_add_u32 s{SRD_K}, s{S_Q}, s{s_t}")
e(f"s_addc_u32 s{SRD_K+1}, s{S_Q+1}, 0")
for u in range(8):
    e(f"s_mov_b32 m0, {VRING+4*VBLK+u*KPAD}")
    e(f"s_mov_b32 s{s_t}, {u*ROWB}")
    e(f"buffer_load_dwordx4 v{v_dk}, {sr(SRD_K,4)}, s{s_t} offen {LDF} lds")
lab("L_noq7")
def kbase_calc():
    e(f"v_and_b32 v{VT+7}, 7, v{VT+4}")
    e(f"v_mul_u32_u24 v{v_kbase}, {KPAD}, v{VT+7}")
    e(f"v_lshrrev_b32 v{VT+7}, 3, v{VT+4}")
    e(f"v_lshl_add_u32 v{v_kbase}, v{VT+7}, 8, v{v_kbase}")
    e(f"v_and_b32 v{VT+7}, 1, v{VT+7}")
    e(f"v_xor_b32 v{VT+7}, v{VT+7}, v{VT+5}")
    e(f"v_lshl_add_u32 v{v_kbase}, v{VT+7}, 7, v{v_kbase}")
    e(f"v_add_u32 v{VT+6}, s{s_qs}, v{v_kbase}")
kbase_calc()
def q_fetch(wait):
    if wait is not None:
        e(f"s_waitcnt vmcnt({wait})")
    for k in range(8):
        e(f"ds_read_b128 {vr(VQ+4*k,4)}, v{VT+6} offset:{16*k}")
    e(f"v_mov_b32 v{v_prog}, 1")
    e("s_waitcnt lgkmcnt(0)")
    e(f"ds_write_b32 v{v_pa}, v{v_prog}")
def ctl_init():
    pass
lab("L_compute")
e(f"s_cmp_lt_u32 s{s_q0}, s{s_qend}")
e("s_cbranch_scc0 L_idle")
if "prio" in XP: e("s_setprio 2")
e(f"v_lshlrev_b32 v{v_h4}, 2, v{VT+5}")
e(f"v_bfe_u32 v{VT+7}, v{v_lane}, 2, 2")
e(f"v_add_u32 v{VT+7}, v{VT+7}, v{v_h4}")
e(f"v_mul_u32_u24 v{v_vbase}, {VPAD}, v{VT+7}")
e(f"v_and_b32 v{VT+7}, 1, v{v_lane}")
e(f"v_lshl_add_u32 v{v_vbase}, v{VT+7}, 5, v{v_vbase}")
e(f"v_bfe_u32 v{VT+7}, v{v_lane}, 4, 1")
e(f"v_lshl_add_u32 v{v_vbase}, v{VT+7}, 4, v{v_vbase}")
e(f"v_bfe_u32 v{VT+7}, v{v_lane}, 1, 1")
e(f"v_lshl_add_u32 v{v_vbase}, v{VT+7}, 3, v{v_vbase}")
e(f"v_add_u32 v{v_vbase}, {VRING}, v{v_vbase}")
e(f"v_mov_b32 v{v_ninf}, 0xff800000")
e(f"v_mov_b32 v{v_l}, 0")
for k in range(4):
    e(f"v_mov_b32 v{VE_+k}, 0")
e(f"v_mov_b32 v{v_negm}, 0")
e("s_nop 0")
for dst in (VO, VO+16, VO+32, VO+48, VC0):
    e(f"v_mfma_f32_32x32x16_bf16 {vr(dst,16)}, {vr(VE_,4)}, {vr(VE_,4)}, 0")
e(f"s_sub_u32 s{s_t}, s{s_nu}, 1")
e(f"s_sub_u32 s{s_maskit}, s{s_t}, s{s_sig0}")
e(f"s_lshl_b32 s{s_t}, s{s_t}, 5")
e(f"s_sub_u32 s{s_kv}, s{s_kv}, s{s_t}")
e(f"s_cmp_ge_u32 s{s_kv}, 32")
e(f"s_cselect_b32 s{s_maskit}, s{s_nu}, s{s_maskit}")
e(f"s_add_u32 s{s_it}, s{s_j0}, 4")
e(f"s_add_u32 s{s_maskit}, s{s_maskit}, s{s_it}")
e(f"s_add_u32 s{s_nu}, s{s_nu}, s{s_it}")
e(f"s_mul_i32 s{s_kp}, s{s_j0}, {KBLK}")
e(f"s_mul_i32 s{s_vp}, s{s_j0}, {VBLK}")
e(f"v_add_u32 v{v_ka}, s{s_kp}, v{v_kbase}")
e(f"v_add_u32 v{v_va}, s{s_vp}, v{v_vbase}")
e(f"s_add_u32 s{s_need}, s{s_j0}, 3")
e(f"s_cmp_eq_u32 s{s_j0}, 0")
e(f"s_cselect_b32 s{s_t3}, 2, s{s_need}")
stamp()
e(f"s_cmp_eq_u32 s{s_wave}, 0")
e("s_cbranch_scc1 L_qdone")
q_fetch(0)
lab("L_qdone")
e(f"s_mov_b32 s86, {f2u(CSCALE):#x}")
e(f"s_mov_b32 s87, {f2u(CSCALE):#x}")
e(f"s_mov_b32 s{s_t2}, 0xffff0000")
for s in range(8):
    for k in range(4):
        q = VQ + 4 * s + k
        e(f"v_lshlrev_b32 v{VT+2*k}, 16, v{q}")
        e(f"v_and_b32 v{VT+2*k+1}, s{s_t2}, v{q}")
    for k in range(8):
        e(f"v_mul_f32 v{VT+k}, s86, v{VT+k}")
    for k in range(4):
        q = VQ + 4 * s + k
        e(f"v_cvt_pk_bf16_f32 v{q}, v{VT+2*k}, v{VT+2*k+1}")
stamp()
lab("L_poll_pre")
e(f"ds_read_b32 v{v_flag}, v{v_ctl}")
e("s_waitcnt lgkmcnt(0)")
e(f"v_readfirstlane_b32 s{s_land}, v{v_flag}")
e(f"s_cmp_ge_u32 s{s_land}, s{s_t3}")
e("s_cbranch_scc1 L_poll_pre_done")
e("s_sleep 1")
e("s_branch L_poll_pre")
lab("L_poll_pre_done")
stamp()
lg.q = []
for s in range(8):
    k_read(s, 0)
def k_read2(s):
    e(f"ds_read_b128 {vr(VKF+4*s,4)}, v{v_ka} offset:{KBLK+16*s}")
    lg.issue(f"N{s}")
for s in range(8):
    lg.need(f"K{s}")
    qk_mfma(s, VS[0], "0")
    if s >= 1: k_read2(s - 1)
k_read2(7)
for x in adv(s_kp, 2 * KBLK, NSLOT * KBLK, v_ka, v_kbase): e(x)
e("s_nop 7")
e(f"s_cmp_eq_u32 s{s_it}, s{s_maskit}")
e("s_cbranch_scc1 L_mask_pre")
lab("L_maskdone_pre")
ool.append(["L_mask_pre:", f"    s_mov_b32 s{s_maskit}, s{s_nu}"] + mask_code(VS[0]) + ["    s_branch L_maskdone_pre"])
lg.drain()
stamp()
body(0, False, "i0")
lg.drain()
e(f"s_mul_i32 s{s_vp}, s{s_j0}, {VBLK}")
e(f"v_add_u32 v{v_va}, s{s_vp}, v{v_vbase}")
stamp()
steady = [f"K{s}" for s in range(8)] + ["W"]
e(f"s_cmp_eq_u32 s{s_it}, s{s_maskit}")
e("s_cbranch_scc1 L_ev_even")
lab("L_loop")
lg.q = list(steady)
body(1, True, "odd")
assert lg.q == steady, lg.q
e(f"s_cmp_eq_u32 s{s_it}, s{s_maskit}")
e("s_cbranch_scc1 L_ev_odd")
lab("L_loop_mid")
body(0, True, "even")
assert lg.q == steady, lg.q
e(f"s_cmp_lg_u32 s{s_it}, s{s_maskit}")
e("s_cbranch_scc1 L_loop")
e("s_branch L_ev_even")
event(0, "odd", "L_fin_odd", "L_loop_mid")
event(1, "even", "L_fin_even", "L_loop")
lab("L_fin_even")
stamp()
lg.q = list(steady)
final_pv(0, "e")
e("s_branch L_epi")
lab("L_fin_odd")
stamp()
lg.q = list(steady)
final_pv(1, "o")
lab("L_epi")
e(f"v_mov_b32 v{VT+1}, v{v_l}")
e("s_nop 1")
e(f"v_permlane32_swap_b32 v{v_l}, v{VT+1}")
e(f"v_add_f32 v{v_l}, v{v_l}, v{VT+1}")
e(f"v_rcp_f32 v{VT+2}, v{v_l}")
va_tw, va_tr, va_st = VT + 8, VT + 9, VT + 10
e(f"s_mul_i32 s{s_t}, s{s_wave}, {SCRW}")
e(f"s_add_u32 s{s_t}, s{s_t}, {SCR}")
e(f"v_and_b32 v{VT}, 31, v{v_lane}")
e(f"v_mul_u32_u24 v{va_tw}, {SROW}, v{VT}")
e(f"v_lshl_add_u32 v{va_tw}, v{v_h4}, 3, v{va_tw}")
e(f"v_add_u32 v{va_tw}, s{s_t}, v{va_tw}")
e(f"v_lshrrev_b32 v{VT}, 2, v{v_lane}")
e(f"v_and_b32 v{VT+1}, 3, v{v_lane}")
e(f"v_mul_u32_u24 v{va_tr}, {SROW}, v{VT}")
e(f"v_lshl_add_u32 v{va_tr}, v{VT+1}, 4, v{va_tr}")
e(f"v_add_u32 v{va_tr}, s{s_t}, v{va_tr}")
e(f"v_lshlrev_b32 v{va_st}, 12, v{VT}")
e(f"v_lshl_add_u32 v{va_st}, v{VT+1}, 4, v{va_st}")
e(f"s_mov_b32 s{s_t2}, {16*ROWB}")
e("s_nop 3")
def norm(dt):
    for k in range(16):
        e(f"v_mul_f32 v{VO+16*dt+k}, v{VT+2}, v{VO+16*dt+k}")
    for k in range(8):
        e(f"v_cvt_pk_bf16_f32 v{VKF+8*dt+k}, v{VO+16*dt+2*k}, v{VO+16*dt+2*k+1}")
norm(0)
for dt in range(4):
    e(f"ds_write_b128 v{va_tw}, {vr(VKF+8*dt,4)}")
    e(f"ds_write_b128 v{va_tw}, {vr(VKF+8*dt+4,4)} offset:16")
    e("s_waitcnt lgkmcnt(0)")
    e(f"ds_read_b128 {vr(VVF+8*dt,4)}, v{va_tr}")
    e(f"ds_read_b128 {vr(VVF+8*dt+4,4)}, v{va_tr} offset:{16*SROW}")
    if dt < 3:
        norm(dt + 1)
    e("s_waitcnt lgkmcnt(0)")
    e(f"buffer_store_dwordx4 {vr(VVF+8*dt,4)}, v{va_st}, {sr(SRD_O,4)}, 0 offen offset:{64*dt} sc1")
    e(f"buffer_store_dwordx4 {vr(VVF+8*dt+4,4)}, v{va_st}, {sr(SRD_O,4)}, s{s_t2} offen offset:{64*dt} sc1")
lab("L_exit")
if "dbg" in XP:
    e("s_waitcnt vmcnt(0)")
    e("s_memrealtime s[92:93]")
    e("s_memtime s[94:95]")
    e("s_load_dwordx2 s[82:83], s[0:1], 40")
    e("s_waitcnt lgkmcnt(0)")
    e("s_and_b32 s80, s2, 31")
    e(f"s_lshl_b32 s81, s{s_wave}, 8")
    e("s_add_u32 s80, s80, s81")
    e(f"s_cmp_eq_u32 s80, {8 + 4*256}")
    e("s_cbranch_scc0 L_nodbg")
    e("s_lshr_b32 s80, s2, 5")
    e("s_lshl_b32 s80, s80, 3")
    e("v_mov_b32 v20, s80")
    e("v_mov_b32 v22, s76")
    e("v_mov_b32 v23, s92")
    e("s_mov_b64 exec, 1")
    e("global_store_dwordx2 v20, v[22:23], s[82:83]")
    lab("L_nodbg")
if DIAG:
    e("s_waitcnt vmcnt(0)")
stamp(); stamp(True)
dump_stamps()
lab("L_end")
e("s_endpgm")

lab("L_idle")
e(f"v_mov_b32 v{v_prog}, 0x7fffffff")
e(f"ds_write_b32 v{v_pa}, v{v_prog}")
if "nopf" not in XP:
    PB0 = int(os.environ.get("PB0", "2")); PW = int(os.environ.get("PW", "4")); PTRIG = int(os.environ.get("PTRIG", "2"))
    segs = [(964, 16, 600, PB0), (516, 14, 600, PB0), (0, 13, 600, PB0), (1456, 8, 1070, PB0), (2021, 8, 1070, PB0), (1702, 7, 1070, PB0), (400, 4, 1070, PB0), (1900, 4, 1070, 0)]
    ent = sorted((b * pace, st + 32 * b) for st, nb, pace, b0 in segs for b in range(b0, nb))
    longj = [j for j in range(16) if jobs[j][6] == 0]
    per = {j: [r for _, r in ent[i::len(longj)]] for i, j in enumerate(longj)}
    NE = max(len(v) for v in per.values()); NE += NE & 1
    e(f"s_lshl_b32 s{s_t}, s{s_mode}, 4")
    e(f"s_add_u32 s{s_t}, s{s_t}, s{s_wave}")
    e(f"s_cmp_eq_u32 s{s_t}, 5")
    e("s_cbranch_scc0 L_exit")
    PR = 56
    for j in longj:
        v = per[j] + [0xfff] * (NE - len(per[j]))
        if j == longj[0]:
            for k in range(NE // 2):
                e(f"s_mov_b32 s{PR+k}, {v[2*k] | (v[2*k+1] << 12):#x}")
        else:
            e(f"s_cmp_eq_u32 s{s_job}, {j}")
            for k in range(NE // 2):
                e(f"s_cselect_b32 s{PR+k}, {v[2*k] | (v[2*k+1] << 12):#x}, s{PR+k}")
    e(f"s_add_u32 s{SRD_K}, s{S_K}, s{s_head256}")
    e(f"s_addc_u32 s{SRD_K+1}, s{S_K+1}, 0")
    e(f"s_add_u32 s{SRD_V}, s{S_V}, s{s_head256}")
    e(f"s_addc_u32 s{SRD_V+1}, s{S_V+1}, 0")
    e(f"s_mov_b32 s{SRD_K+2}, {(T-1)*4096+256}")
    e(f"s_mov_b32 s{SRD_V+2}, {(T-1)*4096+256}")
    e(f"s_mov_b32 s{SRD_K+3}, 0x00020000")
    e(f"s_mov_b32 s{SRD_V+3}, 0x00020000")
    e(f"v_lshrrev_b32 v{VT}, 1, v{v_lane}")
    e(f"v_and_b32 v{VT+1}, 1, v{v_lane}")
    e(f"v_lshlrev_b32 v{VT}, 12, v{VT}")
    e(f"v_lshl_add_u32 v{VT}, v{VT+1}, 7, v{VT}")
    if PTRIG:
        lab("L_pf_wait")
        e(f"ds_read_b32 v{v_flag}, v{v_ctl}")
        e("s_waitcnt lgkmcnt(0)")
        e(f"v_readfirstlane_b32 s{s_land}, v{v_flag}")
        e(f"s_cmp_ge_u32 s{s_land}, {PTRIG}")
        e("s_cbranch_scc1 L_pf_go")
        e("s_sleep 2")
        e("s_branch L_pf_wait")
        lab("L_pf_go")
    for k in range(NE):
        if k & 1:
            e(f"s_bfe_u32 s{s_t}, s{PR+k//2}, 0xc000c")
        else:
            e(f"s_and_b32 s{s_t}, s{PR+k//2}, 0xfff")
        e(f"s_lshl_b32 s{s_t}, s{s_t}, 12")
        if 2 * k >= PW:
            e(f"s_waitcnt vmcnt({PW-2})")
        e(f"buffer_load_dword v{VT+2}, v{VT}, {sr(SRD_K,4)}, s{s_t} offen")
        e(f"buffer_load_dword v{VT+3}, v{VT}, {sr(SRD_V,4)}, s{s_t} offen")
e("s_branch L_exit")
lab("L_loader")
e(f"v_mov_b32 v{VL+11}, {CTL+16}")
for u in range(8):
    e(f"v_add_u32 v{VL+16+u}, {u*ROWB-(u&3)*KPAD}, v{v_dk}")
    e(f"v_add_u32 v{VL+24+u}, {u*ROWB-(u&3)*VPAD}, v{v_dv}")
e(f"s_add_u32 s{SRD_K}, s{S_K}, s{s_head256}")
e(f"s_addc_u32 s{SRD_K+1}, s{S_K+1}, 0")
e(f"s_add_u32 s{SRD_V}, s{S_V}, s{s_head256}")
e(f"s_addc_u32 s{SRD_V+1}, s{S_V+1}, 0")
e(f"s_lshl_b32 s{s_limA}, s{s_aend}, 12")
e(f"s_sub_u32 s{s_limA}, s{s_limA}, {4096-256}")
e(f"s_mov_b32 s{s_limB}, {(DUAL_B[1]-1)*4096+256}")
e(f"s_mov_b32 s{SRD_K+2}, s{s_limA}")
e(f"s_mov_b32 s{SRD_V+2}, s{s_limA}")
e(f"s_mov_b32 s{SRD_K+3}, 0x00020000")
e(f"s_mov_b32 s{SRD_V+3}, 0x00020000")
e(f"s_lshl_b32 s{s_rowBeg}, s{s_abase}, 12")
e(f"s_lshl_b32 s{s_t}, s{s_sig0}, 17")
e(f"s_add_u32 s{s_rowK}, s{s_rowBeg}, s{s_t}")
e(f"s_mov_b32 s{s_rowV}, s{s_rowK}")
e(f"s_lshl_b32 s{s_t}, s{s_NB}, 17")
e(f"s_add_u32 s{s_rowEnd}, s{s_rowBeg}, s{s_t}")
e(f"s_cmp_eq_u32 s{s_mode}, 2")
e(f"s_cselect_b32 s{s_rowEnd}, {(400+128)*4096}, s{s_rowEnd}")
e(f"s_cselect_b32 s{s_rowBeg}, {DUAL_B[0]*4096}, s{s_rowBeg}")
e(f"s_cselect_b32 s{s_limB}, s{s_limB}, s{s_limA}")
e(f"s_mov_b32 s{s_mK}, {KRING}")
e(f"s_mov_b32 s{s_mV}, {VRING}")
WIN = int(os.environ.get("WIN", "5"))
s_iss, s_L, s_nK, s_nV, s_NT, s_fa, s_qp = s_n, s_posted, s_p0, s_p1, s_p2, s_p3, s_pv
e(f"s_mov_b32 s{s_iss}, 0")
e(f"s_mov_b32 s{s_L}, 0")
e(f"s_mov_b32 s{s_nK}, 0")
e(f"s_mov_b32 s{s_nV}, 0")
e(f"s_mov_b32 s{s_free}, 0")
e(f"s_mov_b32 s{s_fa}, 0")
e(f"s_lshl_b32 s{s_NT}, s{s_NB}, 1")

def item(kind):
    srd = SRD_K if kind == "K" else SRD_V
    row = s_rowK if kind == "K" else s_rowV
    m = s_mK if kind == "K" else s_mV
    pad = KPAD if kind == "K" else VPAD
    blk = KBLK if kind == "K" else VBLK
    ring = KRING if kind == "K" else VRING
    vo = VL + 16 if kind == "K" else VL + 24
    cnt = s_nK if kind == "K" else s_nV
    e(f"s_mov_b32 m0, s{m}")
    e(f"s_add_u32 s{s_off}, s{m}, {4*pad}")
    for u in range(8):
        if u == 4:
            e(f"s_mov_b32 m0, s{s_off}")
            e(f"s_add_u32 s{m}, s{m}, {blk}")
        e(f"buffer_load_dwordx4 v{vo+u}, {sr(srd,4)}, s{row} offen offset:{(u&3)*pad} {LDF} lds")
    e(f"s_add_u32 s{row}, s{row}, {32*ROWB}")
    e(f"s_cmp_eq_u32 s{row}, s{s_rowEnd}")
    e(f"s_cselect_b32 s{row}, s{s_rowBeg}, s{row}")
    e(f"s_cselect_b32 s{srd+2}, s{s_limB}, s{srd+2}")
    e(f"s_cmp_eq_u32 s{m}, {ring+NSLOT*blk}")
    e(f"s_cselect_b32 s{m}, {ring}, s{m}")
    e(f"s_add_u32 s{cnt}, s{cnt}, 1")
    e(f"s_add_u32 s{s_iss}, s{s_iss}, 1")
    if DIAG >= 2: stamp()

item("K"); item("K")
kbase_calc()
e(f"s_cmp_lt_u32 s{s_q0}, s{s_qend}")
e(f"s_cselect_b32 s{s_qp}, 1, 0")
e("s_cbranch_scc1 L_ld_top")
e(f"v_mov_b32 v{v_prog}, 0x7fffffff")
e(f"ds_write_b32 v{v_pa}, v{v_prog}")
lab("L_ld_top")
e(f"s_getreg_b32 s{s_t}, hwreg(HW_REG_IB_STS)")
e(f"s_and_b32 s{s_t2}, s{s_t}, 15")
e(f"s_bfe_u32 s{s_t}, s{s_t}, 0x20016")
e(f"s_lshl_b32 s{s_t}, s{s_t}, 4")
e(f"s_add_u32 s{s_t2}, s{s_t2}, s{s_t}")
e(f"s_add_u32 s{s_t2}, s{s_t2}, 7")
e(f"s_lshr_b32 s{s_t2}, s{s_t2}, 3")
e(f"s_sub_u32 s{s_t}, s{s_iss}, s{s_t2}")
e(f"s_cmp_eq_u32 s{s_t}, s{s_L}")
e("s_cbranch_scc1 L_ld_nopost")
e(f"s_mov_b32 s{s_L}, s{s_t}")
e(f"s_sub_i32 s{s_t3}, s{s_t}, 2")
e(f"s_ashr_i32 s{s_t3}, s{s_t3}, 1")
e(f"s_sub_i32 s{s_off}, s{s_t}, s{s_NB}")
e(f"s_max_i32 s{s_t3}, s{s_t3}, s{s_off}")
e(f"s_add_u32 s{s_t3}, s{s_t3}, 3")
e(f"s_cmp_le_u32 s{s_t}, 3")
e(f"s_cselect_b32 s{s_t3}, s{s_t}, s{s_t3}")
e(f"v_mov_b32 v{VL+8}, s{s_t3}")
e(f"ds_write_b32 v{v_ctl}, v{VL+8}")
e(f"s_cmp_eq_u32 s{s_L}, s{s_NT}")
e("s_cbranch_scc1 L_compute")
lab("L_ld_nopost")
e(f"s_cmp_ge_u32 s{s_t2}, {WIN}")
e("s_cbranch_scc1 L_ld_sleep")
e(f"s_cmp_ge_u32 s{s_iss}, s{s_NT}")
e("s_cbranch_scc1 L_ld_sleep")
e(f"s_add_u32 s{s_t}, s{s_nV}, 3")
e(f"s_min_u32 s{s_t}, s{s_t}, s{s_NB}")
e(f"s_cmp_lt_u32 s{s_nK}, s{s_t}")
e("s_cbranch_scc0 L_ld_V")
e(f"s_sub_i32 s{s_t3}, s{s_nK}, 7")
e(f"s_max_i32 s{s_t3}, s{s_t3}, 1")
e(f"s_cmp_eq_u32 s{s_nK}, 8")
e(f"s_cselect_b32 s{s_t3}, 2, s{s_t3}")
e(f"s_cmp_lt_u32 s{s_nK}, 4")
e(f"s_cselect_b32 s{s_t3}, 0, s{s_t3}")
e(f"s_cmp_ge_i32 s{s_free}, s{s_t3}")
e("s_cbranch_scc0 L_ld_poll")
item("K")
e("s_branch L_ld_top")
lab("L_ld_V")
e(f"s_sub_i32 s{s_t3}, s{s_nV}, 5")
e(f"s_cmp_lt_u32 s{s_nV}, 8")
e(f"s_cselect_b32 s{s_t3}, 1, s{s_t3}")
e(f"s_cmp_lt_u32 s{s_nV}, 4")
e(f"s_cselect_b32 s{s_t3}, 0, s{s_t3}")
e(f"s_cmp_ge_i32 s{s_fa}, s{s_t3}")
e("s_cbranch_scc0 L_ld_poll")
item("V")
e("s_branch L_ld_top")
lab("L_ld_poll")
e(f"ds_read_b128 {vr(VL+4,4)}, v{VL+11}")
e(f"ds_read_b128 {vr(VL+12,4)}, v{VL+11} offset:16")
e("s_waitcnt lgkmcnt(0)")
e(f"v_min3_u32 v{VL+4}, v{VL+4}, v{VL+5}, v{VL+6}")
e(f"v_min3_u32 v{VL+12}, v{VL+12}, v{VL+13}, v{VL+14}")
e(f"v_min_u32 v{VL+4}, v{VL+4}, v{VL+7}")
e(f"v_min3_u32 v{VL+12}, v{VL+12}, v{VL+15}, v{VL+4}")
e(f"v_readfirstlane_b32 s{s_t}, v{VL+4}")
e(f"v_readfirstlane_b32 s{s_t2}, v{VL+12}")
e(f"s_min_u32 s{s_t3}, s{s_t}, s{s_qp}")
e(f"s_cmp_eq_u32 s{s_t3}, 0")
e("s_cbranch_scc1 L_ld_noqf")
q_fetch(None)
e(f"s_mov_b32 s{s_qp}, 0")
lab("L_ld_noqf")
e(f"s_add_u32 s{s_t3}, s{s_free}, s{s_fa}")
e(f"s_mov_b32 s{s_free}, s{s_t}")
e(f"s_mov_b32 s{s_fa}, s{s_t2}")
e(f"s_add_u32 s{s_t}, s{s_t}, s{s_t2}")
e(f"s_cmp_lg_u32 s{s_t}, s{s_t3}")
e("s_cbranch_scc1 L_ld_top")
e("s_sleep 2")
lab("L_ld_sleep")
e("s_sleep 1")
e("s_branch L_ld_top")

for b in ool:
    out.extend(b)
out.append("L_codeend:")
out.append("    s_endpgm")
out.append('.section .rodata,"a"')
out.append(".p2align 6")
out.append(f".amdhsa_kernel {NAME}_kernel")
out.append(f"  .amdhsa_next_free_vgpr {NVGPR}")
out.append("  .amdhsa_next_free_sgpr 96")
out.append(f"  .amdhsa_accum_offset {NVGPR}")
out.append("  .amdhsa_group_segment_fixed_size 0")
out.append("  .amdhsa_kernarg_size 56")
out.append("  .amdhsa_user_sgpr_count 2")
out.append("  .amdhsa_user_sgpr_kernarg_segment_ptr 1")
out.append("  .amdhsa_system_sgpr_workgroup_id_x 1")
out.append(".end_amdhsa_kernel")

dst = sys.argv[1] if len(sys.argv) > 1 else f"cdna_kernels/{NAME}.s"
open(dst, "w").write("\n".join(out) + "\n")
print("wrote", dst, len(out), "lines")
```
